```python
import torch

def _softmax(x, axis=-1):
    return torch.softmax(x, dim=axis)
def _gelu(x):
    return torch.nn.functional.gelu(x, approximate="tanh")
def _silu(x):
    return torch.nn.functional.silu(x)
def _sigmoid(x):
    return torch.sigmoid(x)
def _layernorm(x, axis=-1, eps=1e-5):
    m = x.mean(dim=axis, keepdim=True)
    v = x.var(dim=axis, keepdim=True, unbiased=False)
    return (x - m) / torch.sqrt(v + eps)
def _scatter_add(tgt, idx, src, axis=0):
    return tgt.clone().index_add_(axis, idx, src)
def _segment_sum(src, seg, n):
    out = torch.zeros((n,) + src.shape[1:], dtype=src.dtype)
    return out.index_add_(0, seg, src)
def _pad(x, pw):
    flat = tuple(v for pair in reversed(pw) for v in pair)
    return torch.nn.functional.pad(x, flat)

kernel_name = 'standalone__paged_block_table_kv_pagedattention__decode'

def setup_inputs():

    _w = (lambda a: (lambda t: t.to(torch.bfloat16) if t.is_floating_point() else t)(torch.as_tensor(a)))
    B, Hq, Hkv, Sq, Skv, D = 2, 32, 4, 1, 32768, 128
    bs = 16
    nbps = max(1, Skv // bs)
    num_phys = B * nbps + 4
    bt = torch.randperm(num_phys)[: B * nbps].reshape(B, nbps).to(torch.int64)
    cl = (nbps * bs - (torch.arange(1, B + 1, dtype=torch.int64) * 2654435761) % max(1, nbps * bs // 2)).to(torch.int64)
    return {
        "q": _w((lambda *s: torch.randn(*s, dtype=torch.bfloat16) * 0.8)(B, Hq, Sq, D)),
        "k_cache": _w((lambda *s: torch.randn(*s, dtype=torch.bfloat16) * 0.8)(num_phys, bs, Hkv, D)),
        "v_cache": _w((lambda *s: torch.randn(*s, dtype=torch.bfloat16) * 0.05)(num_phys, bs, Hkv, D)),
        "block_table": _w(bt),
        "context_lens": _w(cl),
    }

def reference(q, k_cache, v_cache, block_table, context_lens):
    B, Hq, Sq, D = q.shape
    bs = k_cache.shape[1]
    Hkv = k_cache.shape[2]
    nbps = block_table.shape[1]
    Skv = nbps * bs
    bt = block_table.reshape(-1)
    k = (lambda x, *d: x.permute(*d))(k_cache[bt].reshape(B, Skv, Hkv, D), 0, 2, 1, 3)
    v = (lambda x, *d: x.permute(*d))(v_cache[bt].reshape(B, Skv, Hkv, D), 0, 2, 1, 3)
    g = Hq // Hkv
    qg = q.reshape(B, Hkv, g, Sq, D)
    scores = torch.einsum("bhgqd,bhkd->bhgqk", qg, k) * (D ** -0.5)
    pos = torch.arange(Skv)
    msk = pos[None, :] < context_lens[:, None]
    scores = torch.where(msk[:, None, None, None, :], scores, -1e9)
    p = _softmax(scores, axis=-1)
    out = torch.einsum("bhgqk,bhkd->bhgqd", p, v)
    return out.reshape(B, Hq, Sq, D)
```

```python
import sys, struct

NAME = "standalone__paged_block_table_kv_pagedattention__decode"
KV_BYTES = 4100 * 16384
WS_BYTES = 268697600
SLAB_BASE = 0
LSE_BASE = 2 << 20
STAMP_BASE = 4 << 20
NEG = 0xF149F2CA
SCALE = struct.unpack("<I", struct.pack("<f", 1.4426950408889634 / (128 ** 0.5)))[0]

HEADER = open("cdna_kernels/" + NAME + ".s.ref").read().split("; Override launch geometry")[0]


class G:
    def __init__(self):
        self.L = []
    def __call__(self, s):
        self.L.append("  " + s)
    def label(self, s):
        self.L.append(s + ":")
    def c(self, s):
        self.L.append("  ; " + s)
    def nop(self, n):
        while n > 0:
            k = min(n, 16)
            self(f"s_nop {k-1}")
            n -= k


def srd(A, d, lo, nbytes):
    A(f"s_mov_b32 s{d}, s{lo}")
    A(f"s_mov_b32 s{d+1}, s{lo+1}")
    A(f"s_mov_b32 s{d+2}, {nbytes}")
    A(f"s_mov_b32 s{d+3}, 0x20000")


DPPM = "row_mask:0xf bank_mask:0xf"

vLANE, vR, vG = 2, 3, 4
vKOFF, vVOFF, vADDR = 6, 7, 8
vT0, vT1, vNEG, vMRUN, vMC = 9, 10, 11, 12, 13
vQ = 16
vC = 24
vPA, vPB, vPC = 40, 44, 48
vONE = 52
vO = 56
vL = 88
vK = 96
vV = 176
sW, sPR, sB, sSI, sWI = 3, 4, 5, 6, 7
sK, sV, sWS, sQ, sOUT, sDBG = 24, 28, 32, 36, 40, 44
sBT = 48
sEFF, s8K, sSC, sSELLO, sSELHI = 56, 57, 58, 59, 60
sPB = 61
sOFF, sNV = 66, 71
sKVH, sQZ = 77, 78
sH = 84
sST = 90


def consumer(A, fused, lab, stamps=False):
    vA, vB_, vLS, vGr = 8, 9, 16, 20
    pol = "sc1" if fused else ""
    A.c("---- final combine: line si of group, half = wave")
    A(f"s_lshl_b32 s62, s{sB}, 1")
    A(f"s_add_u32 s62, s62, s{sPR}")
    A(f"s_lshl_b32 s63, s62, 19")
    A(f"s_lshl_b32 s64, s{sSI}, 7")
    A(f"s_add_u32 s63, s63, s64")
    A(f"s_lshl_b32 s64, s{sW}, 6")
    A(f"s_add_u32 s63, s63, s64")
    A(f"v_lshrrev_b32 v10, 2, v{vLANE}")
    A(f"v_and_b32 v11, 3, v{vLANE}")
    A(f"v_lshlrev_b32 v{vA}, 13, v10")
    A(f"v_lshl_add_u32 v{vA}, v11, 4, v{vA}")
    A(f"v_add_u32 v{vA}, s63, v{vA}")
    A(f"s_lshr_b32 s64, s{sSI}, 5")
    A(f"s_and_b32 s65, s{sSI}, 7")
    A(f"s_lshl_b32 s66, s62, 4")
    A(f"s_lshl_b32 s67, s64, 3")
    A(f"s_add_u32 s66, s66, s67")
    A(f"s_add_u32 s66, s66, s65")
    A(f"s_lshl_b32 s66, s66, 10")
    A(f"s_add_u32 s66, s66, {LSE_BASE}")
    A(f"v_lshl_add_u32 v{vB_}, v11, 4, v10")
    A(f"v_lshlrev_b32 v{vB_}, 4, v{vB_}")
    A(f"v_add_u32 v{vB_}, s66, v{vB_}")
    A(f"s_mov_b32 s68, 0x20000")
    A(f"s_mov_b32 s69, 0x40000")
    A(f"s_mov_b32 s70, 0x60000")
    A(f"s_lshl_b32 s67, s{sPR}, 1")
    A(f"s_add_u32 s67, s67, s64")
    A(f"s_lshl_b32 s67, s67, 3")
    A(f"s_add_u32 s67, s67, s65")
    A(f"s_lshl_b32 s71, s{sB}, 5")
    A(f"s_add_u32 s67, s67, s71")
    A(f"s_lshl_b32 s67, s67, 7")
    A(f"s_bfe_u32 s71, s{sSI}, 0x20003")
    A(f"s_lshl_b32 s71, s71, 5")
    A(f"s_add_u32 s67, s67, s71")
    A(f"s_lshl_b32 s71, s{sW}, 2")
    A(f"s_xor_b32 s71, s71, s65")
    A(f"v_xor_b32 v12, s71, v11")
    A(f"v_lshrrev_b32 v13, 4, v{vLANE}")
    A(f"v_lshl_add_u32 v12, v13, 3, v12")
    A(f"v_add_u32 v12, s67, v12")
    A(f"v_lshlrev_b32 v12, 1, v12")
    if fused:
        A(f"s_mov_b32 s72, 0x40000")
        A.label(f"{lab}_poll")
    A(f"buffer_load_dwordx4 v[{vLS}:{vLS+3}], v{vB_}, s[{sWS}:{sWS+3}], 0 offen {pol}")
    for j, so in enumerate(["0", "s68", "s69", "s70"]):
        r = vGr + 4*j
        A(f"buffer_load_dwordx4 v[{r}:{r+3}], v{vA}, s[{sWS}:{sWS+3}], {so} offen {pol}")
    if fused:
        A("s_waitcnt vmcnt(4)")
        A(f"v_xor_b32 v14, s{sH}, v{vLS+1}")
        A(f"v_xor_b32 v15, s{sH+1}, v{vLS+2}")
        A(f"v_or_b32 v14, v14, v15")
        for j in range(4):
            r = vGr + 4*j
            A(f"s_waitcnt vmcnt({3-j})")
            for q in range(4):
                A(f"v_xor_b32 v{r+q}, s{86+q}, v{r+q}")
            if j == 0:
                A(f"v_or3_b32 v15, v{r}, v{r+1}, v{r+2}")
                A(f"v_or_b32 v15, v15, v{r+3}")
            else:
                A(f"v_or3_b32 v15, v15, v{r}, v{r+1}")
                A(f"v_or3_b32 v15, v15, v{r+2}, v{r+3}")
        A(f"v_and_b32 v15, 0xfff, v15")
        A(f"v_or_b32 v14, v14, v15")
        A(f"v_cmp_ne_u32 vcc, 0, v14")
        A(f"s_sub_u32 s72, s72, 1")
        A(f"s_cbranch_scc1 {lab}_end")
        A(f"s_and_b64 exec, exec, vcc")
        A(f"s_cbranch_scc1 {lab}_poll")
        A(f"s_mov_b64 exec, -1")
    else:
        A("s_waitcnt vmcnt(4)")
    if stamps:
        A(f"s_memrealtime s[{sST+8}:{sST+9}]")
    L = vLS
    A(f"v_max_f32_dpp v14, v{L}, v{L} quad_perm:[1,0,3,2] {DPPM}")
    A.nop(2)
    A(f"v_max_f32_dpp v14, v14, v14 quad_perm:[2,3,0,1] {DPPM}")
    A.nop(2)
    A(f"v_max_f32_dpp v14, v14, v14 row_ror:4 {DPPM}")
    A.nop(2)
    A(f"v_max_f32_dpp v14, v14, v14 row_ror:8 {DPPM}")
    A(f"v_mov_b32 v15, v14")
    A.nop(2)
    A(f"v_permlane16_swap_b32 v14, v15")
    A(f"v_max_f32 v14, v14, v15")
    A(f"v_mov_b32 v15, v14")
    A.nop(2)
    A(f"v_permlane32_swap_b32 v14, v15")
    A(f"v_max_f32 v14, v14, v15")
    A(f"v_sub_f32 v14, v{L}, v14")
    A(f"v_exp_f32 v14, v14")
    A.nop(2)
    if not fused:
        A("s_waitcnt vmcnt(0)")
    acc = 36
    def wsum(j):
        op = "v_mul_f32_dpp" if j == 0 else "v_fmac_f32_dpp"
        for q in range(4):
            A(f"{op} v{acc+q}, v14, v{vGr+4*j+q} quad_perm:[{j},{j},{j},{j}] {DPPM}")
    A(f"v_add_f32_dpp v15, v14, v14 quad_perm:[1,0,3,2] {DPPM}")
    wsum(0)
    A(f"v_add_f32_dpp v15, v15, v15 quad_perm:[2,3,0,1] {DPPM}")
    wsum(1)
    A(f"v_add_f32_dpp v15, v15, v15 row_ror:4 {DPPM}")
    wsum(2)
    A(f"v_add_f32_dpp v15, v15, v15 row_ror:8 {DPPM}")
    wsum(3)
    A(f"v_mov_b32 v13, v15")
    A.nop(1)
    A(f"v_permlane16_swap_b32 v{acc}, v{acc+1}")
    A(f"v_permlane16_swap_b32 v{acc+2}, v{acc+3}")
    A(f"v_permlane16_swap_b32 v15, v13")
    A(f"v_add_f32 v{acc}, v{acc}, v{acc+1}")
    A(f"v_add_f32 v{acc+2}, v{acc+2}, v{acc+3}")
    A(f"v_add_f32 v15, v15, v13")
    A(f"v_mov_b32 v13, v15")
    A(f"v_permlane32_swap_b32 v{acc}, v{acc+2}")
    A.nop(1)
    A(f"v_permlane32_swap_b32 v15, v13")
    A(f"v_add_f32 v{acc}, v{acc}, v{acc+2}")
    A(f"v_add_f32 v15, v15, v13")
    A(f"v_rcp_f32 v15, v15")
    A(f"v_add_f32_dpp v{acc}, v{acc}, v{acc} row_ror:4 {DPPM}")
    A.nop(2)
    A(f"v_add_f32_dpp v{acc}, v{acc}, v{acc} row_ror:8 {DPPM}")
    A(f"v_mul_f32 v{acc}, v{acc}, v15")
    A(f"v_cvt_pk_bf16_f32 v{acc}, v{acc}, v{acc}")
    A(f"s_mov_b32 s62, 0x000f000f")
    A(f"s_mov_b32 s63, 0x000f000f")
    A(f"s_mov_b64 exec, s[62:63]")
    A(f"buffer_store_short v{acc}, v12, s[{sOUT}:{sOUT+3}], 0 offen")


def main_kernel(A, name, fused, pol="nt", stamps=False, sched=1):
    A.L.append(f".globl {name}")
    A.L.append(".p2align 8")
    A.L.append(f".type {name},@function")
    A.label(name)
    A("s_cmp_ge_u32 s2, 256")
    A("s_cbranch_scc1 L_end")
    A("s_load_dwordx16 s[8:23], s[0:1], 0")
    if stamps:
        A(f"s_memrealtime s[{sST}:{sST+1}]")
    if fused:
        A(f"s_memrealtime s[{sH}:{sH+1}]")
    A("v_lshrrev_b32 v1, 6, v0")
    A(f"v_and_b32 v{vLANE}, 63, v0")
    A(f"v_readfirstlane_b32 s{sW}, v1")
    A(f"v_and_b32 v{vR}, 15, v0")
    A(f"v_lshrrev_b32 v{vG}, 4, v{vLANE}")
    A(f"s_and_b32 s{sPR}, s2, 1")
    A(f"s_bfe_u32 s{sB}, s2, 0x10001")
    A(f"s_lshr_b32 s{sSI}, s2, 2")
    A(f"s_lshr_b32 s{sWI}, s{sW}, 1")
    A(f"s_lshl_b32 s{sWI}, s{sWI}, 6")
    A(f"s_add_u32 s{sWI}, s{sWI}, s{sSI}")
    A(f"s_and_b32 s{sKVH}, s{sW}, 1")
    A(f"s_lshl_b32 s62, s{sPR}, 1")
    A(f"s_add_u32 s{sKVH}, s{sKVH}, s62")
    A(f"s_lshl_b32 s62, s{sB}, 11")
    A(f"s_add_u32 s62, s62, s{sWI}")
    A(f"s_lshl_b32 s64, s62, 2")
    A(f"s_lshl_b32 s65, s{sB}, 2")
    A(f"v_lshrrev_b32 v5, 1, v{vR}")
    A(f"v_lshlrev_b32 v{vKOFF}, 10, v5")
    A(f"v_lshl_add_u32 v{vKOFF}, v{vG}, 5, v{vKOFF}")
    A(f"v_and_b32 v5, 1, v{vR}")
    A(f"v_lshl_add_u32 v{vKOFF}, v5, 4, v{vKOFF}")
    A(f"v_lshlrev_b32 v{vVOFF}, 11, v{vG}")
    A(f"v_lshl_add_u32 v{vVOFF}, v{vR}, 4, v{vVOFF}")
    A(f"s_lshl_b32 s66, s{sKVH}, 8")
    A(f"v_add_u32 v{vKOFF}, s66, v{vKOFF}")
    A(f"v_add_u32 v{vVOFF}, s66, v{vVOFF}")
    A(f"v_and_b32 v5, 7, v{vR}")
    A(f"v_lshlrev_b32 v14, 8, v5")
    A(f"v_lshl_add_u32 v14, v{vG}, 5, v14")
    A(f"v_lshrrev_b32 v5, 3, v{vR}")
    A(f"v_lshl_add_u32 v14, v5, 4, v14")
    A(f"s_lshl_b32 s67, s{sB}, 13")
    A(f"s_lshl_b32 s68, s{sKVH}, 11")
    A(f"s_add_u32 s67, s67, s68")
    A("s_waitcnt lgkmcnt(0)")
    A(f"s_add_u32 s62, s14, s64")
    A(f"s_addc_u32 s63, s15, 0")
    A(f"s_load_dword s{sEFF}, s[16:17], s65")
    for k in (4, 0, 1, 2, 3, 5, 6, 7):
        A(f"s_load_dword s{sBT+k}, s[62:63], {k*1024}")
    srd(A, sK, 10, KV_BYTES)
    srd(A, sV, 12, KV_BYTES)
    srd(A, sQ, 8, 16384)
    srd(A, sWS, 22, WS_BYTES)
    srd(A, sOUT, 18, 16384)
    srd(A, sDBG, 20, 256)
    A(f"s_movk_i32 s{s8K}, 0x2000")
    A(f"s_mov_b32 s{sSC}, {SCALE:#x}")
    A(f"s_mov_b32 s{sSELLO}, 0x05040100")
    A(f"s_mov_b32 s{sSELHI}, 0x07060302")
    A(f"s_mov_b32 s{sPB}, s{sWI}")
    A(f"v_lshlrev_b32 v{vT0}, 1, v{vG}")
    A(f"v_or_b32 v{vT1}, 1, v{vT0}")
    A(f"v_mov_b32 v{vNEG}, {NEG:#x}")
    A(f"v_mov_b32 v{vMRUN}, {NEG:#x}")
    for i in range(4):
        A(f"v_mov_b32 v{vONE+i}, 0x3f803f80")
    for i in range(36):
        A(f"v_mov_b32 v{vO+i}, 0")
    if fused:
        A(f"s_mul_i32 s86, s{sH}, 0x9E3779B9")
        A(f"s_mul_i32 s87, s{sH+1}, 0x7F4A7C15")
        A(f"s_add_u32 s86, s86, s87")
        A(f"s_mul_hi_u32 s87, s{sH}, 0x7F4A7C15")
        A(f"s_add_u32 s86, s86, s87")
        A(f"s_mul_i32 s{sH}, s{sH}, 0x7F4A7C15")
        A(f"s_or_b32 s{sH+1}, s86, 0x80000000")
        A(f"v_cmp_eq_u32 vcc, 0, v0")
        A(f"v_mov_b32 v92, s{sH}")
        A(f"v_mov_b32 v93, s{sH+1}")
        A(f"v_mov_b32 v94, 0")
        A(f"v_mov_b32 v95, 0")
        A(f"v_bfrev_b32 v42, 1")
        A(f"v_cndmask_b32_e64 v42, v42, 0, vcc")
    A("s_waitcnt lgkmcnt(0)")
    if stamps:
        A(f"s_memrealtime s[{sST+2}:{sST+3}]")
    A(f"s_cmp_le_i32 s{sEFF}, 0")
    A(f"s_cselect_b32 s{sQZ}, 0x80000000, s67")
    A(f"s_cselect_b32 s{sEFF}, 0x8000, s{sEFF}")
    A(f"s_min_i32 s{sEFF}, s{sEFF}, 0x8000")
    A(f"v_add_u32 v14, s{sQZ}, v14")
    A(f"buffer_load_dwordx4 v[{vQ}:{vQ+3}], v14, s[{sQ}:{sQ+3}], 0 offen")
    A(f"buffer_load_dwordx4 v[{vQ+4}:{vQ+7}], v14, s[{sQ}:{sQ+3}], 0 offen offset:128")
    A.label("L_round")
    ks = [4, 0, 1, 2, 3]
    A(f"s_lshl_b32 s62, s{sPB}, 4")
    A(f"s_sub_i32 s62, s{sEFF}, s62")

    def slot_setup(s):
        k = ks[s]
        A(f"s_sub_i32 s{sNV+s}, s62, {k*4096}")
        A(f"s_lshl_b32 s{sOFF+s}, s{sBT+k}, 14")
        A(f"s_cmp_gt_i32 s{sNV+s}, 0")
        A(f"s_cselect_b32 s{sOFF+s}, s{sOFF+s}, 0x80000000")

    def kload(s):
        A(f"v_add_u32 v{vADDR}, s{sOFF+s}, v{vKOFF}")
        for n, (so, o) in enumerate([("0", 0), ("0", 128), (f"s{s8K}", 0), (f"s{s8K}", 128)]):
            r = vK + 16*s + 4*n
            A(f"buffer_load_dwordx4 v[{r}:{r+3}], v{vADDR}, s[{sK}:{sK+3}], {so} offen offset:{o} {pol}")

    def vload(s):
        A(f"v_add_u32 v{vADDR}, s{sOFF+s}, v{vVOFF}")
        for n, (so, o) in enumerate([("0", 0), ("0", 1024), (f"s{s8K}", 0), (f"s{s8K}", 1024)]):
            r = vV + 16*s + 4*n
            A(f"buffer_load_dwordx4 v[{r}:{r+3}], v{vADDR}, s[{sV}:{sV+3}], {so} offen offset:{o} {pol}")

    def qk_mfma(s):
        c = vC + 8*(s & 1)
        k = vK + 16*s
        A(f"v_mfma_f32_16x16x32_bf16 v[{c}:{c+3}], v[{k}:{k+3}], v[{vQ}:{vQ+3}], 0")
        A(f"v_mfma_f32_16x16x32_bf16 v[{c+4}:{c+7}], v[{k+8}:{k+11}], v[{vQ}:{vQ+3}], 0")
        A(f"v_mfma_f32_16x16x32_bf16 v[{c}:{c+3}], v[{k+4}:{k+7}], v[{vQ+4}:{vQ+7}], v[{c}:{c+3}]")
        A(f"v_mfma_f32_16x16x32_bf16 v[{c+4}:{c+7}], v[{k+12}:{k+15}], v[{vQ+4}:{vQ+7}], v[{c+4}:{c+7}]")

    def qk_post(s):
        c = vC + 8*(s & 1)
        x = vK + 16*s
        A(f"s_sub_i32 s63, s{sNV+s}, 8")
        A(f"v_cmp_gt_i32_e64 s[80:81], s{sNV+s}, v{vT0}")
        A(f"v_cmp_gt_i32_e64 s[82:83], s{sNV+s}, v{vT1}")
        A(f"v_add_f32_dpp v{x}, v{c+1}, v{c} row_ror:8 {DPPM}")
        A(f"v_add_f32_dpp v{x+1}, v{c+3}, v{c+2} row_ror:8 {DPPM}")
        A(f"v_add_f32_dpp v{x+2}, v{c+5}, v{c+4} row_ror:8 {DPPM}")
        A(f"v_add_f32_dpp v{x+3}, v{c+7}, v{c+6} row_ror:8 {DPPM}")
        A(f"v_cndmask_b32_e64 v{x}, v{vNEG}, v{x}, s[80:81]")
        A(f"v_cndmask_b32_e64 v{x+1}, v{vNEG}, v{x+1}, s[82:83]")
        A(f"v_cmp_gt_i32_e64 s[80:81], s63, v{vT0}")
        A(f"v_cmp_gt_i32_e64 s[82:83], s63, v{vT1}")
        A.nop(1)
        A(f"v_cndmask_b32_e64 v{x+2}, v{vNEG}, v{x+2}, s[80:81]")
        A(f"v_cndmask_b32_e64 v{x+3}, v{vNEG}, v{x+3}, s[82:83]")
        if s == 0:
            A(f"v_max3_f32 v14, v{x}, v{x+1}, v{x+2}")
            A(f"v_max_f32 v14, v14, v{x+3}")
        else:
            A(f"v_max3_f32 v14, v14, v{x}, v{x+1}")
            A(f"v_max3_f32 v14, v14, v{x+2}, v{x+3}")

    issued = [0]
    def W(idx):
        A(f"s_waitcnt vmcnt({issued[0] - 1 - idx})")
    def KL(s):
        kload(s); issued[0] += 4
    def VL(s):
        vload(s); issued[0] += 4

    for s in range(5):
        slot_setup(s)
        KL(s)
        if sched == 1 and s == 3:
            pass
    if sched == 0:
        for s in range(5): VL(s)
        if fused:
            A(f"buffer_atomic_cmpswap_x2 v[92:95], v42, s[{sDBG}:{sDBG+3}], 0 offen sc0 sc1"); issued[0] += 1
        if stamps: A(f"s_memrealtime s[{sST+4}:{sST+5}]")
        for s in range(5):
            W(4*s+3); qk_mfma(s)
            if s > 0: qk_post(s-1)
        A.nop(8); qk_post(4)
    else:
        W(3); qk_mfma(0)
        VL(0)
        W(7); qk_mfma(1); qk_post(0)
        W(11); qk_mfma(2); qk_post(1)
        VL(1)
        W(15); qk_mfma(3); qk_post(2)
        VL(2)
        W(19); qk_mfma(4); qk_post(3)
        VL(3)
        qk_post(4)
        VL(4)
        if fused:
            A(f"buffer_atomic_cmpswap_x2 v[92:95], v42, s[{sDBG}:{sDBG+3}], 0 offen sc0 sc1"); issued[0] += 1
        if stamps: A(f"s_memrealtime s[{sST+4}:{sST+5}]")
    A(f"v_mov_b32 v15, v14")
    A.nop(2)
    A(f"v_permlane16_swap_b32 v14, v15")
    A(f"v_max_f32 v14, v14, v15")
    A(f"v_mov_b32 v15, v14")
    A.nop(2)
    A(f"v_permlane32_swap_b32 v14, v15")
    A(f"v_max_f32 v14, v14, v15")
    A(f"v_mul_f32 v14, s{sSC}, v14")
    A(f"v_max_f32 v{vMC}, v14, v{vMRUN}")
    A(f"s_cmp_eq_u32 s{sPB}, s{sWI}")
    A(f"s_cbranch_scc1 L_norescale")
    A(f"v_sub_f32 v15, v{vMRUN}, v{vMC}")
    A(f"v_exp_f32 v15, v15")
    A.nop(1)
    for i in range(36):
        A(f"v_mul_f32 v{vO+i}, v{vO+i}, v15")
    A.label("L_norescale")
    A(f"v_mov_b32 v{vMRUN}, v{vMC}")
    pdst = {0: vPA, 1: vPB, 2: vPB+2, 3: vPC, 4: vPC+2}
    for s in range(5):
        x = vK + 16*s
        for q in range(4):
            A(f"v_fma_f32 v{x+q}, v{x+q}, s{sSC}, -v{vMC}")
        for q in range(4):
            A(f"v_exp_f32 v{x+q}, v{x+q}")
        if s > 0:
            xp = vK + 16*(s-1)
            A(f"v_cvt_pk_bf16_f32 v{pdst[s-1]}, v{xp}, v{xp+1}")
            A(f"v_cvt_pk_bf16_f32 v{pdst[s-1]+1}, v{xp+2}, v{xp+3}")
    A.nop(1)
    xp = vK + 64
    A(f"v_cvt_pk_bf16_f32 v{pdst[4]}, v{xp}, v{xp+1}")
    A(f"v_cvt_pk_bf16_f32 v{pdst[4]+1}, v{xp+2}, v{xp+3}")

    def perms(s, dst, stride, sub, irange=range(8)):
        v = vV + 16*s
        for i in irange:
            sel = sSELLO if (i & 1) == 0 else sSELHI
            for u in range(2):
                r0 = v + 8*u + (i >> 1)
                r1 = v + 8*u + 4 + (i >> 1)
                A(f"v_perm_b32 v{dst + stride*i + sub + u}, v{r1}, v{r0}, s{sel}")

    tA, tB, tC = vK, vK + 16, vK + 48
    W(23)
    perms(0, tA, 2, 0)
    A(f"v_mfma_f32_16x16x16_bf16 v[{vL}:{vL+3}], v[{vONE}:{vONE+1}], v[{vPA}:{vPA+1}], v[{vL}:{vL+3}]")
    for i in range(8):
        o = vO + 4*i
        A(f"v_mfma_f32_16x16x16_bf16 v[{o}:{o+3}], v[{tA+2*i}:{tA+2*i+1}], v[{vPA}:{vPA+1}], v[{o}:{o+3}]")
    W(27)
    perms(1, tB, 4, 0)
    W(31)
    perms(2, tB, 4, 2)
    A(f"v_mfma_f32_16x16x32_bf16 v[{vL}:{vL+3}], v[{vONE}:{vONE+3}], v[{vPB}:{vPB+3}], v[{vL}:{vL+3}]")
    for i in range(8):
        o = vO + 4*i
        A(f"v_mfma_f32_16x16x32_bf16 v[{o}:{o+3}], v[{tB+4*i}:{tB+4*i+3}], v[{vPB}:{vPB+3}], v[{o}:{o+3}]")
    A(f"v_mfma_f32_16x16x32_bf16 v[{vL}:{vL+3}], v[{vONE}:{vONE+3}], v[{vPC}:{vPC+3}], v[{vL}:{vL+3}]")
    W(35)
    perms(3, tC, 4, 0)
    A(f"v_lshlrev_b32 v14, 10, v{vG}")
    A(f"v_lshl_add_u32 v14, v{vR}, 7, v14")
    A(f"v_lshl_add_u32 v14, v{vR}, 4, v14")
    A(f"s_lshl_b32 s62, s{sW}, 12")
    A(f"v_add_u32 v14, s62, v14")
    for i in range(8):
        A(f"v_xor_b32 v{vC+i}, {16*i}, v14")
    W(39)
    if stamps: A(f"s_memrealtime s[{sST+6}:{sST+7}]")
    perms(4, tC, 4, 2, range(0, 2))
    for i in range(8):
        if i + 2 < 8:
            perms(4, tC, 4, 2, range(i+2, i+3))
        o = vO + 4*i
        A(f"v_mfma_f32_16x16x32_bf16 v[{o}:{o+3}], v[{tC+4*i}:{tC+4*i+3}], v[{vPC}:{vPC+3}], v[{o}:{o+3}]")
    A(f"s_add_u32 s{sPB}, s{sPB}, 1280")
    A(f"s_lshl_b32 s62, s{sPB}, 4")
    A(f"s_cmp_ge_i32 s62, s{sEFF}")
    A(f"s_cbranch_scc1 L_done")
    A(f"s_mov_b32 s{sBT}, s{sBT+5}")
    A(f"s_mov_b32 s{sBT+1}, s{sBT+6}")
    A(f"s_mov_b32 s{sBT+2}, s{sBT+7}")
    A("s_waitcnt vmcnt(0)")
    if fused:
        A(f"v_mov_b32 v92, s{sH}")
        A(f"v_mov_b32 v93, s{sH+1}")
    A.nop(8)
    A("s_branch L_round")
    A.label("L_done")
    ML = 32768
    A(f"s_mov_b32 s62, 0x00ff00ff")
    A(f"s_mov_b32 s63, 0x00ff00ff")
    A(f"s_mov_b64 exec, s[62:63]")
    A(f"s_and_b32 s64, s{sW}, 1")
    A(f"s_lshl_b32 s64, s64, 8")
    A(f"s_lshr_b32 s65, s{sW}, 1")
    A(f"s_lshl_b32 s65, s65, 3")
    A(f"s_add_u32 s64, s64, s65")
    A(f"v_lshlrev_b32 v15, 5, v{vR}")
    A(f"v_add_u32 v15, s64, v15")
    A(f"v_mov_b32 v{vMC}, v{vL}")
    for i in range(8):
        o = vO + 4*i
        A(f"ds_write_b128 v{vC+i}, v[{o}:{o+3}]")
    A(f"s_mov_b64 exec, 0xff")
    A(f"ds_write_b64 v15, v[{vMRUN}:{vMC}] offset:{ML}")
    if fused:
        A(f"s_cmp_lg_u32 s{sW}, 0")
        A(f"s_cbranch_scc1 L_nononce")
        A("s_waitcnt vmcnt(0)")
        A(f"v_or_b32 v94, v92, v93")
        A(f"v_cmp_eq_u32 vcc, 0, v94")
        A(f"v_mov_b32 v94, s{sH}")
        A(f"v_mov_b32 v95, s{sH+1}")
        A(f"v_cndmask_b32 v92, v92, v94, vcc")
        A(f"v_cndmask_b32 v93, v93, v95, vcc")
        A(f"v_mov_b32 v94, 0")
        A(f"s_mov_b64 exec, 1")
        A(f"ds_write_b64 v94, v[92:93] offset:{ML+512}")
        A.label("L_nononce")
    A(f"s_mov_b64 exec, -1")
    A(f"v_lshrrev_b32 v5, 8, v0")
    A(f"v_and_b32 v6, 255, v0")
    A(f"v_lshlrev_b32 v7, 12, v5")
    A(f"v_lshl_add_u32 v7, v6, 4, v7")
    A(f"v_bfe_u32 v8, v0, 3, 3")
    A(f"v_lshl_add_u32 v8, v5, 3, v8")
    A(f"v_lshlrev_b32 v9, 5, v8")
    A(f"v_mov_b32 v10, 0")
    A(f"s_lshl_b32 s62, s{sB}, 1")
    A(f"s_add_u32 s62, s62, s{sPR}")
    A(f"s_lshl_b32 s63, s62, 6")
    A(f"s_add_u32 s63, s63, s{sSI}")
    A(f"s_lshl_b32 s63, s63, 13")
    A(f"v_lshlrev_b32 v11, 4, v0")
    A(f"v_add_u32 v11, s63, v11")
    A(f"s_lshl_b32 s64, s62, 14")
    A(f"s_lshl_b32 s65, s{sSI}, 4")
    A(f"s_add_u32 s64, s64, s65")
    A(f"s_add_u32 s64, s64, {LSE_BASE}")
    A(f"v_lshlrev_b32 v12, 10, v8")
    A(f"v_add_u32 v12, s64, v12")
    A(f"v_and_b32 v13, 0xc7, v0")
    A(f"v_cmp_eq_u32_e64 s[80:81], 0, v13")
    A("s_waitcnt lgkmcnt(0)")
    A("s_barrier")
    m = 16
    A(f"ds_read_b128 v[{m}:{m+3}], v9 offset:{ML}")
    A(f"ds_read_b128 v[{m+4}:{m+7}], v9 offset:{ML+16}")
    if fused:
        A(f"ds_read_b64 v[40:41], v10 offset:{ML+512}")
    for k in range(4):
        A(f"ds_read_b128 v[{24+4*k}:{27+4*k}], v7 offset:{8192*k}")
    A(f"s_waitcnt lgkmcnt({5 if fused else 4})")
    A(f"v_max3_f32 v44, v{m}, v{m+2}, v{m+4}")
    A(f"v_max_f32 v44, v44, v{m+6}")
    for k in range(4):
        A(f"v_sub_f32 v{m+2*k}, v{m+2*k}, v44")
    for k in range(4):
        A(f"v_exp_f32 v{m+2*k}, v{m+2*k}")
    if fused:
        A(f"s_waitcnt lgkmcnt(4)")
        A(f"v_readfirstlane_b32 s{sH}, v40")
        A(f"v_readfirstlane_b32 s{sH+1}, v41")
    else:
        A.nop(1)
    A(f"v_mul_f32 v45, v{m}, v{m+1}")
    for k in range(1, 4):
        A(f"v_fmac_f32 v45, v{m+2*k}, v{m+2*k+1}")
    A(f"v_rcp_f32 v46, v45")
    A(f"v_log_f32 v47, v45")
    if fused:
        A(f"s_and_b32 s86, s{sH}, 0xfff")
        A(f"s_bfe_u32 s87, s{sH}, 0xc000c")
        A(f"s_lshr_b64 s[88:89], s[{sH}:{sH+1}], 24")
        A(f"s_bfe_u32 s89, s88, 0xc000c")
        A(f"s_and_b32 s88, s88, 0xfff")
        A(f"s_movk_i32 s62, 0xf000")
    else:
        A.nop(1)
    for k in range(4):
        A(f"v_mul_f32 v{m+2*k}, v{m+2*k}, v46")
    A(f"v_add_f32 v48, v44, v47")
    A("s_waitcnt lgkmcnt(0)")
    for q in range(4):
        A(f"v_mul_f32 v{52+q}, v{m}, v{24+q}")
    for k in range(1, 4):
        for q in range(4):
            A(f"v_fmac_f32 v{52+q}, v{m+2*k}, v{24+4*k+q}")
    if fused:
        for q in range(4):
            A(f"v_mov_b32 v{56+q}, s{86+q}")
        for q in range(4):
            A(f"v_and_or_b32 v{52+q}, v{52+q}, s62, v{56+q}")
        A(f"v_mov_b32 v49, s{sH}")
        A(f"v_mov_b32 v50, s{sH+1}")
        A(f"v_mov_b32 v51, 0")
    spol = "sc0 sc1" if fused else ""
    A(f"buffer_store_dwordx4 v[52:55], v11, s[{sWS}:{sWS+3}], 0 offen {spol}")
    A(f"s_mov_b64 exec, s[80:81]")
    A(f"s_cbranch_execz L_nolse")
    A(f"buffer_store_dwordx4 v[48:51], v12, s[{sWS}:{sWS+3}], 0 offen {spol}")
    A.label("L_nolse")
    A(f"s_mov_b64 exec, -1")
    if fused:
        A(f"s_cmp_ge_u32 s{sW}, 2")
        A(f"s_cbranch_scc1 L_fin")
        consumer(A, True, "L_c", stamps)
        A.label("L_c_end")
        A.label("L_fin")
    if stamps:
        A("s_waitcnt vmcnt(0)")
        A(f"s_memrealtime s[{sST+10}:{sST+11}]")
        A("s_waitcnt lgkmcnt(0)")
        A("s_mov_b64 exec, 1")
        for i in range(6):
            A(f"v_mov_b32 v{16+i}, s{sST+2*i}")
        A("s_getreg_b32 s62, hwreg(HW_REG_XCC_ID)")
        A("v_mov_b32 v22, s62")
        A("v_mov_b32 v23, 0")
        A(f"s_lshl_b32 s62, s2, 3")
        A(f"s_add_u32 s62, s62, s{sW}")
        A(f"s_lshl_b32 s62, s62, 5")
        A(f"s_add_u32 s62, s62, {STAMP_BASE}")
        A(f"v_mov_b32 v1, s62")
        A(f"buffer_store_dwordx4 v[16:19], v1, s[{sWS}:{sWS+3}], 0 offen")
        A(f"buffer_store_dwordx4 v[20:23], v1, s[{sWS}:{sWS+3}], 0 offen offset:16")
    A.label("L_end")
    A("s_endpgm")


def combine_kernel(A, name):
    A.L.append(f".globl {name}")
    A.L.append(".p2align 8")
    A.L.append(f".type {name},@function")
    A.label(name)
    A("s_cmp_ge_u32 s2, 256")
    A("s_cbranch_scc1 L2_end")
    A("s_load_dwordx2 s[18:19], s[0:1], 40")
    A("s_load_dwordx2 s[22:23], s[0:1], 56")
    A("v_lshrrev_b32 v1, 6, v0")
    A(f"v_and_b32 v{vLANE}, 63, v0")
    A(f"v_readfirstlane_b32 s{sW}, v1")
    A(f"s_and_b32 s{sPR}, s2, 1")
    A(f"s_bfe_u32 s{sB}, s2, 0x10001")
    A(f"s_lshr_b32 s{sSI}, s2, 2")
    A("s_waitcnt lgkmcnt(0)")
    srd(A, sWS, 22, WS_BYTES)
    srd(A, sOUT, 18, 16384)
    consumer(A, False, "L2")
    A.label("L2_end")
    A("s_endpgm")


def kd(name, vgpr, sgpr=102):
    return f""".amdhsa_kernel {name}
  .amdhsa_next_free_vgpr {vgpr}
  .amdhsa_next_free_sgpr {sgpr}
  .amdhsa_accum_offset {vgpr}
  .amdhsa_group_segment_fixed_size 0
  .amdhsa_kernarg_size 64
  .amdhsa_user_sgpr_count 2
  .amdhsa_user_sgpr_kernarg_segment_ptr 1
  .amdhsa_system_sgpr_workgroup_id_x 1
.end_amdhsa_kernel
"""


def gen(fused=True, pol="nt", stamps=False, sched=1):
    A = G()
    k1 = NAME + "_kernel"
    k2 = "combine_kernel"
    lds = 32768 + 1024
    out = HEADER
    if fused:
        out += f"; @launch grid=(256,1,1) block=(512,1,1) lds={lds}\n"
    else:
        out += f"; @launch kernel={k1} grid=(256,1,1) block=(512,1,1) lds={lds}\n"
        out += f"; @launch kernel={k2} grid=(256,1,1) block=(128,1,1) lds=0\n"
    out += '.amdgcn_target "amdgcn-amd-amdhsa--gfx950"\n.text\n'
    main_kernel(A, k1, fused, pol, stamps, sched)
    if not fused:
        combine_kernel(A, k2)
    out += "\n".join(A.L) + "\n"
    out += '.section .rodata,"a"\n.p2align 6\n' + kd(k1, 256)
    if not fused:
        out += ".p2align 6\n" + kd(k2, 40)
    return out


if __name__ == "__main__":
    kw = eval("dict(" + (sys.argv[2] if len(sys.argv) > 2 else "") + ")")
    open(sys.argv[1], "w").write(gen(**kw))
```

```python
import sys, struct

NAME = "standalone__paged_block_table_kv_pagedattention__decode"
KV_BYTES = 4100 * 16384
WS_BYTES = 268697600
SLAB_BASE = 0
LSE_BASE = 2 << 20
STAMP_BASE = 4 << 20
NEG = 0xF149F2CA
SCALE = struct.unpack("<I", struct.pack("<f", 1.4426950408889634 / (128 ** 0.5)))[0]

HEADER = open("cdna_kernels/" + NAME + ".s.ref").read().split("; Override launch geometry")[0]


class G:
    def __init__(self):
        self.L = []
    def __call__(self, s):
        self.L.append("  " + s)
    def label(self, s):
        self.L.append(s + ":")
    def c(self, s):
        self.L.append("  ; " + s)
    def nop(self, n):
        while n > 0:
            k = min(n, 16)
            self(f"s_nop {k-1}")
            n -= k


def srd(A, d, lo, nbytes):
    A(f"s_mov_b32 s{d}, s{lo}")
    A(f"s_mov_b32 s{d+1}, s{lo+1}")
    A(f"s_mov_b32 s{d+2}, {nbytes}")
    A(f"s_mov_b32 s{d+3}, 0x20000")


DPPM = "row_mask:0xf bank_mask:0xf"

vLANE, vR, vG = 2, 3, 4
vKOFF, vVOFF, vADDR = 6, 7, 8
vT0, vT1, vNEG, vMRUN, vMC = 9, 10, 11, 12, 13
vQ = 16
vC = 24
vPA, vPB, vPC = 40, 44, 48
vONE = 52
vO = 56
vL = 88
vK = 96
vV = 176
sW, sPR, sB, sSI, sWI = 3, 4, 5, 6, 7
sK, sV, sWS, sQ, sOUT, sDBG = 24, 28, 32, 36, 40, 44
sBT = 48
sEFF, s8K, sSC, sSELLO, sSELHI = 56, 57, 58, 59, 60
sPB = 61
sOFF, sNV = 66, 71
sKVH, sQZ = 77, 78
sH = 84
sST = 90


def consumer(A, fused, lab, stamps=False):
    vA, vB_, vLS, vGr = 8, 9, 16, 20
    pol = "sc1" if fused else ""
    A.c("---- final combine: line si of group, half = wave")
    A(f"s_lshl_b32 s62, s{sB}, 1")
    A(f"s_add_u32 s62, s62, s{sPR}")
    A(f"s_lshl_b32 s63, s62, 19")
    A(f"s_lshl_b32 s64, s{sSI}, 7")
    A(f"s_add_u32 s63, s63, s64")
    A(f"s_lshl_b32 s64, s{sW}, 6")
    A(f"s_add_u32 s63, s63, s64")
    A(f"v_lshrrev_b32 v10, 2, v{vLANE}")
    A(f"v_and_b32 v11, 3, v{vLANE}")
    A(f"v_lshlrev_b32 v{vA}, 13, v10")
    A(f"v_lshl_add_u32 v{vA}, v11, 4, v{vA}")
    A(f"v_add_u32 v{vA}, s63, v{vA}")
    A(f"s_lshr_b32 s64, s{sSI}, 5")
    A(f"s_and_b32 s65, s{sSI}, 7")
    A(f"s_lshl_b32 s66, s62, 4")
    A(f"s_lshl_b32 s67, s64, 3")
    A(f"s_add_u32 s66, s66, s67")
    A(f"s_add_u32 s66, s66, s65")
    A(f"s_lshl_b32 s66, s66, 10")
    A(f"s_add_u32 s66, s66, {LSE_BASE}")
    A(f"v_lshl_add_u32 v{vB_}, v11, 4, v10")
    A(f"v_lshlrev_b32 v{vB_}, 4, v{vB_}")
    A(f"v_add_u32 v{vB_}, s66, v{vB_}")
    A(f"s_mov_b32 s68, 0x20000")
    A(f"s_mov_b32 s69, 0x40000")
    A(f"s_mov_b32 s70, 0x60000")
    A(f"s_lshl_b32 s67, s{sPR}, 1")
    A(f"s_add_u32 s67, s67, s64")
    A(f"s_lshl_b32 s67, s67, 3")
    A(f"s_add_u32 s67, s67, s65")
    A(f"s_lshl_b32 s71, s{sB}, 5")
    A(f"s_add_u32 s67, s67, s71")
    A(f"s_lshl_b32 s67, s67, 7")
    A(f"s_bfe_u32 s71, s{sSI}, 0x20003")
    A(f"s_lshl_b32 s71, s71, 5")
    A(f"s_add_u32 s67, s67, s71")
    A(f"s_lshl_b32 s71, s{sW}, 2")
    A(f"s_xor_b32 s71, s71, s65")
    A(f"v_xor_b32 v12, s71, v11")
    A(f"v_lshrrev_b32 v13, 4, v{vLANE}")
    A(f"v_lshl_add_u32 v12, v13, 3, v12")
    A(f"v_add_u32 v12, s67, v12")
    A(f"v_lshlrev_b32 v12, 1, v12")
    if fused:
        A(f"s_mov_b32 s72, 0x40000")
        A.label(f"{lab}_poll")
    A(f"buffer_load_dwordx4 v[{vLS}:{vLS+3}], v{vB_}, s[{sWS}:{sWS+3}], 0 offen {pol}")
    for j, so in enumerate(["0", "s68", "s69", "s70"]):
        r = vGr + 4*j
        A(f"buffer_load_dwordx4 v[{r}:{r+3}], v{vA}, s[{sWS}:{sWS+3}], {so} offen {pol}")
    if fused:
        A("s_waitcnt vmcnt(4)")
        A(f"v_xor_b32 v14, s{sH}, v{vLS+1}")
        A(f"v_xor_b32 v15, s{sH+1}, v{vLS+2}")
        A(f"v_or_b32 v14, v14, v15")
        for j in range(4):
            r = vGr + 4*j
            A(f"s_waitcnt vmcnt({3-j})")
            for q in range(4):
                A(f"v_xor_b32 v{r+q}, s{86+q}, v{r+q}")
            if j == 0:
                A(f"v_or3_b32 v15, v{r}, v{r+1}, v{r+2}")
                A(f"v_or_b32 v15, v15, v{r+3}")
            else:
                A(f"v_or3_b32 v15, v15, v{r}, v{r+1}")
                A(f"v_or3_b32 v15, v15, v{r+2}, v{r+3}")
        A(f"v_and_b32 v15, 0xfff, v15")
        A(f"v_or_b32 v14, v14, v15")
        A(f"v_cmp_ne_u32 vcc, 0, v14")
        A(f"s_sub_u32 s72, s72, 1")
        A(f"s_cbranch_scc1 {lab}_end")
        A(f"s_and_b64 exec, exec, vcc")
        A(f"s_cbranch_scc1 {lab}_poll")
        A(f"s_mov_b64 exec, -1")
    else:
        A("s_waitcnt vmcnt(4)")
    if stamps:
        A(f"s_memrealtime s[{sST+8}:{sST+9}]")
    L = vLS
    A(f"v_max_f32_dpp v14, v{L}, v{L} quad_perm:[1,0,3,2] {DPPM}")
    A.nop(2)
    A(f"v_max_f32_dpp v14, v14, v14 quad_perm:[2,3,0,1] {DPPM}")
    A.nop(2)
    A(f"v_max_f32_dpp v14, v14, v14 row_ror:4 {DPPM}")
    A.nop(2)
    A(f"v_max_f32_dpp v14, v14, v14 row_ror:8 {DPPM}")
    A(f"v_mov_b32 v15, v14")
    A.nop(2)
    A(f"v_permlane16_swap_b32 v14, v15")
    A(f"v_max_f32 v14, v14, v15")
    A(f"v_mov_b32 v15, v14")
    A.nop(2)
    A(f"v_permlane32_swap_b32 v14, v15")
    A(f"v_max_f32 v14, v14, v15")
    A(f"v_sub_f32 v14, v{L}, v14")
    A(f"v_exp_f32 v14, v14")
    A.nop(2)
    if not fused:
        A("s_waitcnt vmcnt(0)")
    acc = 36
    def wsum(j):
        op = "v_mul_f32_dpp" if j == 0 else "v_fmac_f32_dpp"
        for q in range(4):
            A(f"{op} v{acc+q}, v14, v{vGr+4*j+q} quad_perm:[{j},{j},{j},{j}] {DPPM}")
    A(f"v_add_f32_dpp v15, v14, v14 quad_perm:[1,0,3,2] {DPPM}")
    wsum(0)
    A(f"v_add_f32_dpp v15, v15, v15 quad_perm:[2,3,0,1] {DPPM}")
    wsum(1)
    A(f"v_add_f32_dpp v15, v15, v15 row_ror:4 {DPPM}")
    wsum(2)
    A(f"v_add_f32_dpp v15, v15, v15 row_ror:8 {DPPM}")
    wsum(3)
    A(f"v_mov_b32 v13, v15")
    A.nop(1)
    A(f"v_permlane16_swap_b32 v{acc}, v{acc+1}")
    A(f"v_permlane16_swap_b32 v{acc+2}, v{acc+3}")
    A(f"v_permlane16_swap_b32 v15, v13")
    A(f"v_add_f32 v{acc}, v{acc}, v{acc+1}")
    A(f"v_add_f32 v{acc+2}, v{acc+2}, v{acc+3}")
    A(f"v_add_f32 v15, v15, v13")
    A(f"v_mov_b32 v13, v15")
    A(f"v_permlane32_swap_b32 v{acc}, v{acc+2}")
    A.nop(1)
    A(f"v_permlane32_swap_b32 v15, v13")
    A(f"v_add_f32 v{acc}, v{acc}, v{acc+2}")
    A(f"v_add_f32 v15, v15, v13")
    A(f"v_rcp_f32 v15, v15")
    A(f"v_add_f32_dpp v{acc}, v{acc}, v{acc} row_ror:4 {DPPM}")
    A.nop(2)
    A(f"v_add_f32_dpp v{acc}, v{acc}, v{acc} row_ror:8 {DPPM}")
    A(f"v_mul_f32 v{acc}, v{acc}, v15")
    A(f"v_cvt_pk_bf16_f32 v{acc}, v{acc}, v{acc}")
    A(f"s_mov_b32 s62, 0x000f000f")
    A(f"s_mov_b32 s63, 0x000f000f")
    A(f"s_mov_b64 exec, s[62:63]")
    A(f"buffer_store_short v{acc}, v12, s[{sOUT}:{sOUT+3}], 0 offen")


def main_kernel(A, name, fused, pol="nt", stamps=False, sched=1):
    A.L.append(f".globl {name}")
    A.L.append(".p2align 8")
    A.L.append(f".type {name},@function")
    A.label(name)
    A("s_cmp_ge_u32 s2, 256")
    A("s_cbranch_scc1 L_end")
    A("s_load_dwordx16 s[8:23], s[0:1], 0")
    if stamps:
        A(f"s_memrealtime s[{sST}:{sST+1}]")
    if fused:
        A(f"s_memrealtime s[{sH}:{sH+1}]")
    A("v_lshrrev_b32 v1, 6, v0")
    A(f"v_and_b32 v{vLANE}, 63, v0")
    A(f"v_readfirstlane_b32 s{sW}, v1")
    A(f"v_and_b32 v{vR}, 15, v0")
    A(f"v_lshrrev_b32 v{vG}, 4, v{vLANE}")
    A(f"s_and_b32 s{sPR}, s2, 1")
    A(f"s_bfe_u32 s{sB}, s2, 0x10001")
    A(f"s_lshr_b32 s{sSI}, s2, 2")
    A(f"s_lshr_b32 s{sWI}, s{sW}, 1")
    A(f"s_lshl_b32 s{sWI}, s{sWI}, 6")
    A(f"s_add_u32 s{sWI}, s{sWI}, s{sSI}")
    A(f"s_and_b32 s{sKVH}, s{sW}, 1")
    A(f"s_lshl_b32 s62, s{sPR}, 1")
    A(f"s_add_u32 s{sKVH}, s{sKVH}, s62")
    A(f"s_lshl_b32 s62, s{sB}, 11")
    A(f"s_add_u32 s62, s62, s{sWI}")
    A(f"s_lshl_b32 s64, s62, 2")
    A(f"s_lshl_b32 s65, s{sB}, 2")
    A(f"v_lshrrev_b32 v5, 1, v{vR}")
    A(f"v_lshlrev_b32 v{vKOFF}, 10, v5")
    A(f"v_lshl_add_u32 v{vKOFF}, v{vG}, 5, v{vKOFF}")
    A(f"v_and_b32 v5, 1, v{vR}")
    A(f"v_lshl_add_u32 v{vKOFF}, v5, 4, v{vKOFF}")
    A(f"v_lshlrev_b32 v{vVOFF}, 11, v{vG}")
    A(f"v_lshl_add_u32 v{vVOFF}, v{vR}, 4, v{vVOFF}")
    A(f"s_lshl_b32 s66, s{sKVH}, 8")
    A(f"v_add_u32 v{vKOFF}, s66, v{vKOFF}")
    A(f"v_add_u32 v{vVOFF}, s66, v{vVOFF}")
    A(f"v_and_b32 v5, 7, v{vR}")
    A(f"v_lshlrev_b32 v14, 8, v5")
    A(f"v_lshl_add_u32 v14, v{vG}, 5, v14")
    A(f"v_lshrrev_b32 v5, 3, v{vR}")
    A(f"v_lshl_add_u32 v14, v5, 4, v14")
    A(f"s_lshl_b32 s67, s{sB}, 13")
    A(f"s_lshl_b32 s68, s{sKVH}, 11")
    A(f"s_add_u32 s67, s67, s68")
    A("s_waitcnt lgkmcnt(0)")
    A(f"s_add_u32 s62, s14, s64")
    A(f"s_addc_u32 s63, s15, 0")
    A(f"s_load_dword s{sEFF}, s[16:17], s65")
    for k in (4, 0, 1, 2, 3, 5, 6, 7):
        A(f"s_load_dword s{sBT+k}, s[62:63], {k*1024}")
    srd(A, sK, 10, KV_BYTES)
    srd(A, sV, 12, KV_BYTES)
    srd(A, sQ, 8, 16384)
    srd(A, sWS, 22, WS_BYTES)
    srd(A, sOUT, 18, 16384)
    srd(A, sDBG, 20, 256)
    A(f"s_movk_i32 s{s8K}, 0x2000")
    A(f"s_mov_b32 s{sSC}, {SCALE:#x}")
    A(f"s_mov_b32 s{sSELLO}, 0x05040100")
    A(f"s_mov_b32 s{sSELHI}, 0x07060302")
    A(f"s_mov_b32 s{sPB}, s{sWI}")
    A(f"v_lshlrev_b32 v{vT0}, 1, v{vG}")
    A(f"v_or_b32 v{vT1}, 1, v{vT0}")
    A(f"v_mov_b32 v{vNEG}, {NEG:#x}")
    A(f"v_mov_b32 v{vMRUN}, {NEG:#x}")
    for i in range(4):
        A(f"v_mov_b32 v{vONE+i}, 0x3f803f80")
    for i in range(36):
        A(f"v_mov_b32 v{vO+i}, 0")
    if fused:
        A(f"s_mul_i32 s86, s{sH}, 0x9E3779B9")
        A(f"s_mul_i32 s87, s{sH+1}, 0x7F4A7C15")
        A(f"s_add_u32 s86, s86, s87")
        A(f"s_mul_hi_u32 s87, s{sH}, 0x7F4A7C15")
        A(f"s_add_u32 s86, s86, s87")
        A(f"s_mul_i32 s{sH}, s{sH}, 0x7F4A7C15")
        A(f"s_or_b32 s{sH+1}, s86, 0x80000000")
        A(f"v_cmp_eq_u32 vcc, 0, v0")
        A(f"v_mov_b32 v92, s{sH}")
        A(f"v_mov_b32 v93, s{sH+1}")
        A(f"v_mov_b32 v94, 0")
        A(f"v_mov_b32 v95, 0")
        A(f"v_bfrev_b32 v42, 1")
        A(f"v_cndmask_b32_e64 v42, v42, 0, vcc")
    A("s_waitcnt lgkmcnt(0)")
    if stamps:
        A(f"s_memrealtime s[{sST+2}:{sST+3}]")
    A(f"s_cmp_le_i32 s{sEFF}, 0")
    A(f"s_cselect_b32 s{sQZ}, 0x80000000, s67")
    A(f"s_cselect_b32 s{sEFF}, 0x8000, s{sEFF}")
    A(f"s_min_i32 s{sEFF}, s{sEFF}, 0x8000")
    A(f"v_add_u32 v14, s{sQZ}, v14")
    A(f"buffer_load_dwordx4 v[{vQ}:{vQ+3}], v14, s[{sQ}:{sQ+3}], 0 offen")
    A(f"buffer_load_dwordx4 v[{vQ+4}:{vQ+7}], v14, s[{sQ}:{sQ+3}], 0 offen offset:128")
    A.label("L_round")
    ks = [4, 0, 1, 2, 3]
    A(f"s_lshl_b32 s62, s{sPB}, 4")
    A(f"s_sub_i32 s62, s{sEFF}, s62")

    def slot_setup(s):
        k = ks[s]
        A(f"s_sub_i32 s{sNV+s}, s62, {k*4096}")
        A(f"s_lshl_b32 s{sOFF+s}, s{sBT+k}, 14")
        A(f"s_cmp_gt_i32 s{sNV+s}, 0")
        A(f"s_cselect_b32 s{sOFF+s}, s{sOFF+s}, 0x80000000")

    def kload(s):
        A(f"v_add_u32 v{vADDR}, s{sOFF+s}, v{vKOFF}")
        for n, (so, o) in enumerate([("0", 0), ("0", 128), (f"s{s8K}", 0), (f"s{s8K}", 128)]):
            r = vK + 16*s + 4*n
            A(f"buffer_load_dwordx4 v[{r}:{r+3}], v{vADDR}, s[{sK}:{sK+3}], {so} offen offset:{o} {pol}")

    def vload(s):
        A(f"v_add_u32 v{vADDR}, s{sOFF+s}, v{vVOFF}")
        for n, (so, o) in enumerate([("0", 0), ("0", 1024), (f"s{s8K}", 0), (f"s{s8K}", 1024)]):
            r = vV + 16*s + 4*n
            A(f"buffer_load_dwordx4 v[{r}:{r+3}], v{vADDR}, s[{sV}:{sV+3}], {so} offen offset:{o} {pol}")

    def qk_mfma(s):
        c = vC + 8*(s & 1)
        k = vK + 16*s
        A(f"v_mfma_f32_16x16x32_bf16 v[{c}:{c+3}], v[{k}:{k+3}], v[{vQ}:{vQ+3}], 0")
        A(f"v_mfma_f32_16x16x32_bf16 v[{c+4}:{c+7}], v[{k+8}:{k+11}], v[{vQ}:{vQ+3}], 0")
        A(f"v_mfma_f32_16x16x32_bf16 v[{c}:{c+3}], v[{k+4}:{k+7}], v[{vQ+4}:{vQ+7}], v[{c}:{c+3}]")
        A(f"v_mfma_f32_16x16x32_bf16 v[{c+4}:{c+7}], v[{k+12}:{k+15}], v[{vQ+4}:{vQ+7}], v[{c+4}:{c+7}]")

    def qk_post(s):
        c = vC + 8*(s & 1)
        x = vK + 16*s
        A(f"s_sub_i32 s63, s{sNV+s}, 8")
        A(f"v_cmp_gt_i32_e64 s[80:81], s{sNV+s}, v{vT0}")
        A(f"v_cmp_gt_i32_e64 s[82:83], s{sNV+s}, v{vT1}")
        A(f"v_add_f32_dpp v{x}, v{c+1}, v{c} row_ror:8 {DPPM}")
        A(f"v_add_f32_dpp v{x+1}, v{c+3}, v{c+2} row_ror:8 {DPPM}")
        A(f"v_add_f32_dpp v{x+2}, v{c+5}, v{c+4} row_ror:8 {DPPM}")
        A(f"v_add_f32_dpp v{x+3}, v{c+7}, v{c+6} row_ror:8 {DPPM}")
        A(f"v_cndmask_b32_e64 v{x}, v{vNEG}, v{x}, s[80:81]")
        A(f"v_cndmask_b32_e64 v{x+1}, v{vNEG}, v{x+1}, s[82:83]")
        A(f"v_cmp_gt_i32_e64 s[80:81], s63, v{vT0}")
        A(f"v_cmp_gt_i32_e64 s[82:83], s63, v{vT1}")
        A.nop(1)
        A(f"v_cndmask_b32_e64 v{x+2}, v{vNEG}, v{x+2}, s[80:81]")
        A(f"v_cndmask_b32_e64 v{x+3}, v{vNEG}, v{x+3}, s[82:83]")
        if s == 0:
            A(f"v_max3_f32 v14, v{x}, v{x+1}, v{x+2}")
            A(f"v_max_f32 v14, v14, v{x+3}")
        else:
            A(f"v_max3_f32 v14, v14, v{x}, v{x+1}")
            A(f"v_max3_f32 v14, v14, v{x+2}, v{x+3}")

    issued = [0]
    def W(idx):
        A(f"s_waitcnt vmcnt({issued[0] - 1 - idx})")
    def KL(s):
        kload(s); issued[0] += 4
    def VL(s):
        vload(s); issued[0] += 4

    for s in range(5):
        slot_setup(s)
        KL(s)
        if sched == 1 and s == 3:
            pass
    if sched == 0:
        for s in range(5): VL(s)
        if fused:
            A(f"buffer_atomic_cmpswap_x2 v[92:95], v42, s[{sDBG}:{sDBG+3}], 0 offen sc0 sc1"); issued[0] += 1
        if stamps: A(f"s_memrealtime s[{sST+4}:{sST+5}]")
        for s in range(5):
            W(4*s+3); qk_mfma(s)
            if s > 0: qk_post(s-1)
        A.nop(8); qk_post(4)
    else:
        W(3); qk_mfma(0)
        VL(0)
        W(7); qk_mfma(1); qk_post(0)
        W(11); qk_mfma(2); qk_post(1)
        VL(1)
        W(15); qk_mfma(3); qk_post(2)
        VL(2)
        W(19); qk_mfma(4); qk_post(3)
        VL(3)
        qk_post(4)
        VL(4)
        if fused:
            A(f"buffer_atomic_cmpswap_x2 v[92:95], v42, s[{sDBG}:{sDBG+3}], 0 offen sc0 sc1"); issued[0] += 1
        if stamps: A(f"s_memrealtime s[{sST+4}:{sST+5}]")
    A(f"v_mov_b32 v15, v14")
    A.nop(2)
    A(f"v_permlane16_swap_b32 v14, v15")
    A(f"v_max_f32 v14, v14, v15")
    A(f"v_mov_b32 v15, v14")
    A.nop(2)
    A(f"v_permlane32_swap_b32 v14, v15")
    A(f"v_max_f32 v14, v14, v15")
    A(f"v_mul_f32 v14, s{sSC}, v14")
    A(f"v_max_f32 v{vMC}, v14, v{vMRUN}")
    A(f"s_cmp_eq_u32 s{sPB}, s{sWI}")
    A(f"s_cbranch_scc1 L_norescale")
    A(f"v_sub_f32 v15, v{vMRUN}, v{vMC}")
    A(f"v_exp_f32 v15, v15")
    A.nop(1)
    for i in range(36):
        A(f"v_mul_f32 v{vO+i}, v{vO+i}, v15")
    A.label("L_norescale")
    A(f"v_mov_b32 v{vMRUN}, v{vMC}")
    pdst = {0: vPA, 1: vPB, 2: vPB+2, 3: vPC, 4: vPC+2}
    for s in range(5):
        x = vK + 16*s
        for q in range(4):
            A(f"v_fma_f32 v{x+q}, v{x+q}, s{sSC}, -v{vMC}")
        for q in range(4):
            A(f"v_exp_f32 v{x+q}, v{x+q}")
        if s > 0:
            xp = vK + 16*(s-1)
            A(f"v_cvt_pk_bf16_f32 v{pdst[s-1]}, v{xp}, v{xp+1}")
            A(f"v_cvt_pk_bf16_f32 v{pdst[s-1]+1}, v{xp+2}, v{xp+3}")
    A.nop(1)
    xp = vK + 64
    A(f"v_cvt_pk_bf16_f32 v{pdst[4]}, v{xp}, v{xp+1}")
    A(f"v_cvt_pk_bf16_f32 v{pdst[4]+1}, v{xp+2}, v{xp+3}")

    def perms(s, dst, stride, sub, irange=range(8)):
        v = vV + 16*s
        for i in irange:
            sel = sSELLO if (i & 1) == 0 else sSELHI
            for u in range(2):
                r0 = v + 8*u + (i >> 1)
                r1 = v + 8*u + 4 + (i >> 1)
                A(f"v_perm_b32 v{dst + stride*i + sub + u}, v{r1}, v{r0}, s{sel}")

    tA, tB, tC = vK, vK + 16, vK + 48
    W(23)
    perms(0, tA, 2, 0)
    A(f"v_mfma_f32_16x16x16_bf16 v[{vL}:{vL+3}], v[{vONE}:{vONE+1}], v[{vPA}:{vPA+1}], v[{vL}:{vL+3}]")
    for i in range(8):
        o = vO + 4*i
        A(f"v_mfma_f32_16x16x16_bf16 v[{o}:{o+3}], v[{tA+2*i}:{tA+2*i+1}], v[{vPA}:{vPA+1}], v[{o}:{o+3}]")
    W(27)
    perms(1, tB, 4, 0)
    W(31)
    perms(2, tB, 4, 2)
    A(f"v_mfma_f32_16x16x32_bf16 v[{vL}:{vL+3}], v[{vONE}:{vONE+3}], v[{vPB}:{vPB+3}], v[{vL}:{vL+3}]")
    for i in range(8):
        o = vO + 4*i
        A(f"v_mfma_f32_16x16x32_bf16 v[{o}:{o+3}], v[{tB+4*i}:{tB+4*i+3}], v[{vPB}:{vPB+3}], v[{o}:{o+3}]")
    A(f"v_mfma_f32_16x16x32_bf16 v[{vL}:{vL+3}], v[{vONE}:{vONE+3}], v[{vPC}:{vPC+3}], v[{vL}:{vL+3}]")
    W(35)
    perms(3, tC, 4, 0)
    A(f"v_lshlrev_b32 v14, 10, v{vG}")
    A(f"v_lshl_add_u32 v14, v{vR}, 7, v14")
    A(f"v_lshl_add_u32 v14, v{vR}, 4, v14")
    A(f"s_lshl_b32 s62, s{sW}, 12")
    A(f"v_add_u32 v14, s62, v14")
    for i in range(8):
        A(f"v_xor_b32 v{vC+i}, {16*i}, v14")
    W(39)
    if stamps: A(f"s_memrealtime s[{sST+6}:{sST+7}]")
    perms(4, tC, 4, 2, range(0, 2))
    for i in range(8):
        if i + 2 < 8:
            perms(4, tC, 4, 2, range(i+2, i+3))
        o = vO + 4*i
        A(f"v_mfma_f32_16x16x32_bf16 v[{o}:{o+3}], v[{tC+4*i}:{tC+4*i+3}], v[{vPC}:{vPC+3}], v[{o}:{o+3}]")
    A(f"s_add_u32 s{sPB}, s{sPB}, 1280")
    A(f"s_lshl_b32 s62, s{sPB}, 4")
    A(f"s_cmp_ge_i32 s62, s{sEFF}")
    A(f"s_cbranch_scc1 L_done")
    A(f"s_mov_b32 s{sBT}, s{sBT+5}")
    A(f"s_mov_b32 s{sBT+1}, s{sBT+6}")
    A(f"s_mov_b32 s{sBT+2}, s{sBT+7}")
    A("s_waitcnt vmcnt(0)")
    if fused:
        A(f"v_mov_b32 v92, s{sH}")
        A(f"v_mov_b32 v93, s{sH+1}")
    A.nop(8)
    A("s_branch L_round")
    A.label("L_done")
    ML = 32768
    A(f"s_mov_b32 s62, 0x00ff00ff")
    A(f"s_mov_b32 s63, 0x00ff00ff")
    A(f"s_mov_b64 exec, s[62:63]")
    A(f"s_and_b32 s64, s{sW}, 1")
    A(f"s_lshl_b32 s64, s64, 8")
    A(f"s_lshr_b32 s65, s{sW}, 1")
    A(f"s_lshl_b32 s65, s65, 3")
    A(f"s_add_u32 s64, s64, s65")
    A(f"v_lshlrev_b32 v15, 5, v{vR}")
    A(f"v_add_u32 v15, s64, v15")
    A(f"v_mov_b32 v{vMC}, v{vL}")
    for i in range(8):
        o = vO + 4*i
        A(f"ds_write_b128 v{vC+i}, v[{o}:{o+3}]")
    A(f"s_mov_b64 exec, 0xff")
    A(f"ds_write_b64 v15, v[{vMRUN}:{vMC}] offset:{ML}")
    if fused:
        A(f"s_cmp_lg_u32 s{sW}, 0")
        A(f"s_cbranch_scc1 L_nononce")
        A("s_waitcnt vmcnt(0)")
        A(f"v_or_b32 v94, v92, v93")
        A(f"v_cmp_eq_u32 vcc, 0, v94")
        A(f"v_mov_b32 v94, s{sH}")
        A(f"v_mov_b32 v95, s{sH+1}")
        A(f"v_cndmask_b32 v92, v92, v94, vcc")
        A(f"v_cndmask_b32 v93, v93, v95, vcc")
        A(f"v_mov_b32 v94, 0")
        A(f"s_mov_b64 exec, 1")
        A(f"ds_write_b64 v94, v[92:93] offset:{ML+512}")
        A.label("L_nononce")
    A(f"s_mov_b64 exec, -1")
    A(f"v_lshrrev_b32 v5, 8, v0")
    A(f"v_and_b32 v6, 255, v0")
    A(f"v_lshlrev_b32 v7, 12, v5")
    A(f"v_lshl_add_u32 v7, v6, 4, v7")
    A(f"v_bfe_u32 v8, v0, 3, 3")
    A(f"v_lshl_add_u32 v8, v5, 3, v8")
    A(f"v_lshlrev_b32 v9, 5, v8")
    A(f"v_mov_b32 v10, 0")
    A(f"s_lshl_b32 s62, s{sB}, 1")
    A(f"s_add_u32 s62, s62, s{sPR}")
    A(f"s_lshl_b32 s63, s62, 6")
    A(f"s_add_u32 s63, s63, s{sSI}")
    A(f"s_lshl_b32 s63, s63, 13")
    A(f"v_lshlrev_b32 v11, 4, v0")
    A(f"v_add_u32 v11, s63, v11")
    A(f"s_lshl_b32 s64, s62, 14")
    A(f"s_lshl_b32 s65, s{sSI}, 4")
    A(f"s_add_u32 s64, s64, s65")
    A(f"s_add_u32 s64, s64, {LSE_BASE}")
    A(f"v_lshlrev_b32 v12, 10, v8")
    A(f"v_add_u32 v12, s64, v12")
    A(f"v_and_b32 v13, 0xc7, v0")
    A(f"v_cmp_eq_u32_e64 s[80:81], 0, v13")
    A("s_waitcnt lgkmcnt(0)")
    A("s_barrier")
    m = 16
    A(f"ds_read_b128 v[{m}:{m+3}], v9 offset:{ML}")
    A(f"ds_read_b128 v[{m+4}:{m+7}], v9 offset:{ML+16}")
    if fused:
        A(f"ds_read_b64 v[40:41], v10 offset:{ML+512}")
    for k in range(4):
        A(f"ds_read_b128 v[{24+4*k}:{27+4*k}], v7 offset:{8192*k}")
    A(f"s_waitcnt lgkmcnt({5 if fused else 4})")
    A(f"v_max3_f32 v44, v{m}, v{m+2}, v{m+4}")
    A(f"v_max_f32 v44, v44, v{m+6}")
    for k in range(4):
        A(f"v_sub_f32 v{m+2*k}, v{m+2*k}, v44")
    for k in range(4):
        A(f"v_exp_f32 v{m+2*k}, v{m+2*k}")
    if fused:
        A(f"s_waitcnt lgkmcnt(4)")
        A(f"v_readfirstlane_b32 s{sH}, v40")
        A(f"v_readfirstlane_b32 s{sH+1}, v41")
    else:
        A.nop(1)
    A(f"v_mul_f32 v45, v{m}, v{m+1}")
    for k in range(1, 4):
        A(f"v_fmac_f32 v45, v{m+2*k}, v{m+2*k+1}")
    A(f"v_rcp_f32 v46, v45")
    A(f"v_log_f32 v47, v45")
    if fused:
        A(f"s_and_b32 s86, s{sH}, 0xfff")
        A(f"s_bfe_u32 s87, s{sH}, 0xc000c")
        A(f"s_lshr_b64 s[88:89], s[{sH}:{sH+1}], 24")
        A(f"s_bfe_u32 s89, s88, 0xc000c")
        A(f"s_and_b32 s88, s88, 0xfff")
        A(f"s_movk_i32 s62, 0xf000")
    else:
        A.nop(1)
    for k in range(4):
        A(f"v_mul_f32 v{m+2*k}, v{m+2*k}, v46")
    A(f"v_add_f32 v48, v44, v47")
    A("s_waitcnt lgkmcnt(0)")
    for q in range(4):
        A(f"v_mul_f32 v{52+q}, v{m}, v{24+q}")
    for k in range(1, 4):
        for q in range(4):
            A(f"v_fmac_f32 v{52+q}, v{m+2*k}, v{24+4*k+q}")
    if fused:
        for q in range(4):
            A(f"v_mov_b32 v{56+q}, s{86+q}")
        for q in range(4):
            A(f"v_and_or_b32 v{52+q}, v{52+q}, s62, v{56+q}")
        A(f"v_mov_b32 v49, s{sH}")
        A(f"v_mov_b32 v50, s{sH+1}")
        A(f"v_mov_b32 v51, 0")
    spol = "sc0 sc1" if fused else ""
    A(f"buffer_store_dwordx4 v[52:55], v11, s[{sWS}:{sWS+3}], 0 offen {spol}")
    A(f"s_mov_b64 exec, s[80:81]")
    A(f"s_cbranch_execz L_nolse")
    A(f"buffer_store_dwordx4 v[48:51], v12, s[{sWS}:{sWS+3}], 0 offen {spol}")
    A.label("L_nolse")
    A(f"s_mov_b64 exec, -1")
    if fused:
        A(f"s_cmp_ge_u32 s{sW}, 2")
        A(f"s_cbranch_scc1 L_fin")
        consumer(A, True, "L_c", stamps)
        A.label("L_c_end")
        A.label("L_fin")
    if stamps:
        A("s_waitcnt vmcnt(0)")
        A(f"s_memrealtime s[{sST+10}:{sST+11}]")
        A("s_waitcnt lgkmcnt(0)")
        if stamps == 2:
            A("s_mov_b64 exec, -1")
            A("v_mov_b32 v16, 0")
            for i in range(6):
                A(f"v_writelane_b32 v16, s{sST+2*i}, {2*i}")
                A(f"s_not_b32 s62, s{sST+2*i}")
                A(f"v_writelane_b32 v16, s62, {2*i+1}")
            if fused:
                A(f"s_cmp_lt_u32 s{sW}, 2")
                A(f"s_cbranch_scc1 L_keep")
            A(f"v_writelane_b32 v16, 0, 8")
            A(f"v_writelane_b32 v16, 0, 9")
            if fused:
                A.label("L_keep")
            A(f"v_and_b32 v17, 63, v0")
            A(f"v_lshlrev_b32 v17, 2, v17")
            A("s_mov_b64 exec, 0xfff")
            A(f"buffer_atomic_umax v16, v17, s[{sDBG}:{sDBG+3}], 0 offen offset:16 sc1")
        A("s_mov_b64 exec, 1")
        for i in range(6):
            A(f"v_mov_b32 v{16+i}, s{sST+2*i}")
        A("s_getreg_b32 s62, hwreg(HW_REG_XCC_ID)")
        A("v_mov_b32 v22, s62")
        A("v_mov_b32 v23, 0")
        A(f"s_lshl_b32 s62, s2, 3")
        A(f"s_add_u32 s62, s62, s{sW}")
        A(f"s_lshl_b32 s62, s62, 5")
        A(f"s_add_u32 s62, s62, {STAMP_BASE}")
        A(f"v_mov_b32 v1, s62")
        A(f"buffer_store_dwordx4 v[16:19], v1, s[{sWS}:{sWS+3}], 0 offen")
        A(f"buffer_store_dwordx4 v[20:23], v1, s[{sWS}:{sWS+3}], 0 offen offset:16")
    A.label("L_end")
    A("s_endpgm")


def combine_kernel(A, name):
    A.L.append(f".globl {name}")
    A.L.append(".p2align 8")
    A.L.append(f".type {name},@function")
    A.label(name)
    A("s_cmp_ge_u32 s2, 256")
    A("s_cbranch_scc1 L2_end")
    A("s_load_dwordx2 s[18:19], s[0:1], 40")
    A("s_load_dwordx2 s[22:23], s[0:1], 56")
    A("v_lshrrev_b32 v1, 6, v0")
    A(f"v_and_b32 v{vLANE}, 63, v0")
    A(f"v_readfirstlane_b32 s{sW}, v1")
    A(f"s_and_b32 s{sPR}, s2, 1")
    A(f"s_bfe_u32 s{sB}, s2, 0x10001")
    A(f"s_lshr_b32 s{sSI}, s2, 2")
    A("s_waitcnt lgkmcnt(0)")
    srd(A, sWS, 22, WS_BYTES)
    srd(A, sOUT, 18, 16384)
    consumer(A, False, "L2")
    A.label("L2_end")
    A("s_endpgm")


def kd(name, vgpr, sgpr=102):
    return f""".amdhsa_kernel {name}
  .amdhsa_next_free_vgpr {vgpr}
  .amdhsa_next_free_sgpr {sgpr}
  .amdhsa_accum_offset {vgpr}
  .amdhsa_group_segment_fixed_size 0
  .amdhsa_kernarg_size 64
  .amdhsa_user_sgpr_count 2
  .amdhsa_user_sgpr_kernarg_segment_ptr 1
  .amdhsa_system_sgpr_workgroup_id_x 1
.end_amdhsa_kernel
"""


def gen(fused=True, pol="nt", stamps=False, sched=1):
    A = G()
    k1 = NAME + "_kernel"
    k2 = "combine_kernel"
    lds = 32768 + 1024
    out = HEADER
    if fused:
        out += f"; @launch grid=(256,1,1) block=(512,1,1) lds={lds}\n"
    else:
        out += f"; @launch kernel={k1} grid=(256,1,1) block=(512,1,1) lds={lds}\n"
        out += f"; @launch kernel={k2} grid=(256,1,1) block=(128,1,1) lds=0\n"
    out += '.amdgcn_target "amdgcn-amd-amdhsa--gfx950"\n.text\n'
    main_kernel(A, k1, fused, pol, stamps, sched)
    if not fused:
        combine_kernel(A, k2)
    out += "\n".join(A.L) + "\n"
    out += '.section .rodata,"a"\n.p2align 6\n' + kd(k1, 256)
    if not fused:
        out += ".p2align 6\n" + kd(k2, 40)
    return out


if __name__ == "__main__":
    kw = eval("dict(" + (sys.argv[2] if len(sys.argv) > 2 else "") + ")")
    open(sys.argv[1], "w").write(gen(**kw))
```

```python
import sys, struct

NAME = "standalone__paged_block_table_kv_pagedattention__decode"
KV_BYTES = 4100 * 16384
WS_BYTES = 268697600
LSE_BASE = 3 << 20
LAY = dict(SS=8192, LS=128)
GS = 640 << 10
STAMP_BASE = 4 << 20
NEG = 0xF149F2CA
SCALE = struct.unpack("<I", struct.pack("<f", 1.4426950408889634 / (128 ** 0.5)))[0]
HEADER = open("cdna_kernels/" + NAME + ".s.ref").read().split("; Override launch geometry")[0]


class G:
    def __init__(self):
        self.L = []
    def __call__(self, s):
        self.L.append("  " + s)
    def label(self, s):
        self.L.append(s + ":")
    def c(self, s):
        self.L.append("  ; " + s)
    def nop(self, n):
        while n > 0:
            k = min(n, 16)
            self(f"s_nop {k-1}")
            n -= k


def srd(A, d, lo, nbytes):
    A(f"s_mov_b32 s{d}, s{lo}")
    A(f"s_mov_b32 s{d+1}, s{lo+1}")
    A(f"s_mov_b32 s{d+2}, {nbytes}")
    A(f"s_mov_b32 s{d+3}, 0x20000")


DPPM = "row_mask:0xf bank_mask:0xf"
vLANE, vR, vG = 2, 3, 4
vKOFF, vVOFF, vADDR = 6, 7, 8
vT0, vT1, vNEG, vMRUN, vMC = 9, 10, 11, 12, 13
vQ = 16
vC = 24
vPA, vPB, vPC = 40, 44, 48
vONE = 52
vO = 56
vL = 88
vK = 96
vV = 176
sW, sPR, sB, sSI, sWI = 3, 4, 5, 6, 7
sK, sV, sWS, sQ, sOUT, sDBG = 24, 28, 32, 36, 40, 44
sBT = 48
sBTA = 54
sEFF, s8K, sSC, sSELLO, sSELHI = 56, 57, 58, 59, 60
sPB = 61
sOFF, sNV = 66, 71
sKVH = 77
sH = 84
sST = 90
cA, cB, cOUT, cLS, cG, cACC = 96, 97, 98, 100, 104, 120


def consumer_addr(A):
    A.c("final-combine addresses: line si of the group, half = wave")
    A(f"s_lshl_b32 s62, s{sB}, 1")
    A(f"s_add_u32 s62, s62, s{sPR}")
    A(f"s_mul_i32 s63, s62, {GS}")
    A(f"s_mul_i32 s64, s{sSI}, {LAY['LS']}")
    A(f"s_add_u32 s63, s63, s64")
    A(f"s_lshl_b32 s64, s{sW}, 6")
    A(f"s_add_u32 s63, s63, s64")
    A(f"v_lshrrev_b32 v124, 2, v{vLANE}")
    A(f"v_and_b32 v125, 3, v{vLANE}")
    A(f"v_mul_u32_u24 v{cA}, {LAY['SS']}, v124")
    A(f"v_lshl_add_u32 v{cA}, v125, 4, v{cA}")
    A(f"v_add_u32 v{cA}, s63, v{cA}")
    A(f"s_lshr_b32 s64, s{sSI}, 5")
    A(f"s_and_b32 s65, s{sSI}, 7")
    A(f"s_lshl_b32 s66, s62, 4")
    A(f"s_lshl_b32 s67, s64, 3")
    A(f"s_add_u32 s66, s66, s67")
    A(f"s_add_u32 s66, s66, s65")
    A(f"s_lshl_b32 s66, s66, 10")
    A(f"s_add_u32 s66, s66, {LSE_BASE}")
    A(f"v_lshl_add_u32 v{cB}, v125, 4, v124")
    A(f"v_lshlrev_b32 v{cB}, 4, v{cB}")
    A(f"v_add_u32 v{cB}, s66, v{cB}")
    A(f"s_mov_b32 s8, {16*LAY['SS']}")
    A(f"s_mov_b32 s9, {32*LAY['SS']}")
    A(f"s_mov_b32 s10, {48*LAY['SS']}")
    A(f"s_lshl_b32 s67, s{sPR}, 1")
    A(f"s_add_u32 s67, s67, s64")
    A(f"s_lshl_b32 s67, s67, 3")
    A(f"s_add_u32 s67, s67, s65")
    A(f"s_lshl_b32 s66, s{sB}, 5")
    A(f"s_add_u32 s67, s67, s66")
    A(f"s_lshl_b32 s67, s67, 7")
    A(f"s_bfe_u32 s66, s{sSI}, 0x20003")
    A(f"s_lshl_b32 s66, s66, 5")
    A(f"s_add_u32 s67, s67, s66")
    A(f"s_lshl_b32 s66, s{sW}, 2")
    A(f"s_xor_b32 s66, s66, s65")
    A(f"v_xor_b32 v{cOUT}, s66, v125")
    A(f"v_lshrrev_b32 v124, 4, v{vLANE}")
    A(f"v_lshl_add_u32 v{cOUT}, v124, 3, v{cOUT}")
    A(f"v_add_u32 v{cOUT}, s67, v{cOUT}")
    A(f"v_lshlrev_b32 v{cOUT}, 1, v{cOUT}")


def consumer(A, fused, lab, stamps=False, T=8, sleep=8, lpol="sc1", first_full=True, presleep=0):
    pol = lpol if fused else ""
    so = ["0", "s8", "s9", "s10"]
    t0, t1, t2 = 124, 125, 126
    def ld_l():
        A(f"buffer_load_dwordx4 v[{cLS}:{cLS+3}], v{cB}, s[{sWS}:{sWS+3}], 0 offen {pol}")
    def ld_g(j):
        r = cG + 4*j
        A(f"buffer_load_dwordx4 v[{r}:{r+3}], v{cA}, s[{sWS}:{sWS+3}], {so[j]} offen {pol}")
    if fused:
        pL = 62; pG = [64, 66, 68, 70]
        def P(x): return f"s[{x}:{x+1}]"
        def chk_l():
            A(f"v_xor_b32 v{t0}, s{sH}, v{cLS+1}")
            A(f"v_xor_b32 v{t1}, s{sH+1}, v{cLS+2}")
            A(f"v_or_b32 v{t0}, v{t0}, v{t1}")
            A(f"v_cmp_ne_u32_e64 {P(pL)}, 0, v{t0}")
        def chk_g(j):
            r = cG + 4*j
            for q in range(4):
                A(f"v_xor_b32 v{r+q}, s{86+q}, v{r+q}")
            A(f"v_or3_b32 v{t1}, v{r}, v{r+1}, v{r+2}")
            A(f"v_or_b32 v{t1}, v{t1}, v{r+3}")
            A(f"v_and_b32 v{t1}, 0xfff, v{t1}")
            A(f"v_cmp_ne_u32_e64 {P(pG[j])}, 0, v{t1}")
        A(f"s_mov_b32 s72, 0x100000")
        for _ in range(presleep):
            A("s_sleep 127")
        if first_full:
            ld_l()
            for j in range(4): ld_g(j)
            A("s_waitcnt vmcnt(4)")
            chk_l()
            for j in range(4):
                A(f"s_waitcnt vmcnt({3-j})")
                chk_g(j)
        else:
            A(f"s_mov_b64 {P(pL)}, -1")
            for j in range(4):
                A(f"s_mov_b64 {P(pG[j])}, -1")
        A.label(f"{lab}_test")
        A(f"s_or_b64 s[74:75], {P(pL)}, {P(pG[0])}")
        A(f"s_or_b64 s[80:81], {P(pG[1])}, {P(pG[2])}")
        A(f"s_or_b64 s[74:75], s[74:75], {P(pG[3])}")
        A(f"s_or_b64 s[74:75], s[74:75], s[80:81]")
        A(f"s_cbranch_scc0 {lab}_ready")
        A.label(f"{lab}_slow")
        A(f"s_sub_u32 s72, s72, 1")
        A(f"s_cbranch_scc1 {lab}_end")
        A(f"s_bcnt1_i32_b64 s73, {P(pL)}")
        A(f"s_cmp_le_u32 s73, {T}")
        A(f"s_cbranch_scc1 {lab}_full")
        A(f"s_sleep {sleep}")
        A(f"s_mov_b64 exec, {P(pL)}")
        ld_l()
        A("s_waitcnt vmcnt(0)")
        chk_l()
        A(f"s_branch {lab}_slow")
        A.label(f"{lab}_full")
        A(f"s_mov_b64 exec, {P(pL)}")
        A(f"s_cbranch_execz {lab}_s0")
        ld_l()
        for j in range(4):
            A.label(f"{lab}_s{j}")
            A(f"s_mov_b64 exec, {P(pG[j])}")
            A(f"s_cbranch_execz {lab}_s{j+1}")
            ld_g(j)
        A.label(f"{lab}_s4")
        A("s_waitcnt vmcnt(0)")
        A(f"s_mov_b64 exec, {P(pL)}")
        chk_l()
        for j in range(4):
            A(f"s_mov_b64 exec, {P(pG[j])}")
            chk_g(j)
        A(f"s_branch {lab}_test")
        A.label(f"{lab}_ready")
        A(f"s_mov_b64 exec, -1")
    else:
        ld_l()
        for j in range(4): ld_g(j)
        A("s_waitcnt vmcnt(4)")
    if stamps:
        A(f"s_memrealtime s[{sST+8}:{sST+9}]")
    L = cLS
    A(f"v_max_f32_dpp v{t0}, v{L}, v{L} quad_perm:[1,0,3,2] {DPPM}")
    A.nop(2)
    A(f"v_max_f32_dpp v{t0}, v{t0}, v{t0} quad_perm:[2,3,0,1] {DPPM}")
    A.nop(2)
    A(f"v_max_f32_dpp v{t0}, v{t0}, v{t0} row_ror:4 {DPPM}")
    A.nop(2)
    A(f"v_max_f32_dpp v{t0}, v{t0}, v{t0} row_ror:8 {DPPM}")
    A(f"v_mov_b32 v{t1}, v{t0}")
    A.nop(2)
    A(f"v_permlane16_swap_b32 v{t0}, v{t1}")
    A(f"v_max_f32 v{t0}, v{t0}, v{t1}")
    A(f"v_mov_b32 v{t1}, v{t0}")
    A.nop(2)
    A(f"v_permlane32_swap_b32 v{t0}, v{t1}")
    A(f"v_max_f32 v{t0}, v{t0}, v{t1}")
    A(f"v_sub_f32 v{t0}, v{L}, v{t0}")
    A(f"v_exp_f32 v{t0}, v{t0}")
    A.nop(2)
    if not fused:
        A("s_waitcnt vmcnt(0)")
    acc = cACC
    def wsum(j):
        op = "v_mul_f32_dpp" if j == 0 else "v_fmac_f32_dpp"
        for q in range(4):
            A(f"{op} v{acc+q}, v{t0}, v{cG+4*j+q} quad_perm:[{j},{j},{j},{j}] {DPPM}")
    A(f"v_add_f32_dpp v{t1}, v{t0}, v{t0} quad_perm:[1,0,3,2] {DPPM}")
    wsum(0)
    A(f"v_add_f32_dpp v{t1}, v{t1}, v{t1} quad_perm:[2,3,0,1] {DPPM}")
    wsum(1)
    A(f"v_add_f32_dpp v{t1}, v{t1}, v{t1} row_ror:4 {DPPM}")
    wsum(2)
    A(f"v_add_f32_dpp v{t1}, v{t1}, v{t1} row_ror:8 {DPPM}")
    wsum(3)
    A(f"v_mov_b32 v{t2}, v{t1}")
    A.nop(1)
    A(f"v_permlane16_swap_b32 v{acc}, v{acc+1}")
    A(f"v_permlane16_swap_b32 v{acc+2}, v{acc+3}")
    A(f"v_permlane16_swap_b32 v{t1}, v{t2}")
    A(f"v_add_f32 v{acc}, v{acc}, v{acc+1}")
    A(f"v_add_f32 v{acc+2}, v{acc+2}, v{acc+3}")
    A(f"v_add_f32 v{t1}, v{t1}, v{t2}")
    A(f"v_mov_b32 v{t2}, v{t1}")
    A(f"v_permlane32_swap_b32 v{acc}, v{acc+2}")
    A.nop(1)
    A(f"v_permlane32_swap_b32 v{t1}, v{t2}")
    A(f"v_add_f32 v{acc}, v{acc}, v{acc+2}")
    A(f"v_add_f32 v{t1}, v{t1}, v{t2}")
    A(f"v_rcp_f32 v{t1}, v{t1}")
    A(f"v_add_f32_dpp v{acc}, v{acc}, v{acc} row_ror:4 {DPPM}")
    A(f"s_mov_b32 s62, 0x000f000f")
    A(f"s_mov_b32 s63, 0x000f000f")
    A(f"v_add_f32_dpp v{acc}, v{acc}, v{acc} row_ror:8 {DPPM}")
    A(f"v_mul_f32 v{acc}, v{acc}, v{t1}")
    A(f"v_cvt_pk_bf16_f32 v{acc}, v{acc}, v{acc}")
    A(f"s_mov_b64 exec, s[62:63]")
    A(f"buffer_store_short v{acc}, v{cOUT}, s[{sOUT}:{sOUT+3}], 0 offen")


def main_kernel(A, name, fused, pol="nt", stamps=False, prefetch=True, T=8, sleep=8, spol="sc0 sc1", lpol="sc1", atom=1, spol2k="", first_full=True, presleep=0, prewrite=0):
    A.L.append(f".globl {name}")
    A.L.append(".p2align 8")
    A.L.append(f".type {name},@function")
    A.label(name)
    A("s_load_dwordx16 s[8:23], s[0:1], 0")
    A("s_cmp_ge_u32 s2, 256")
    A("s_cbranch_scc1 L_end")
    if prefetch:
        A("s_getpc_b64 s[62:63]")
        A.label("L_pc")
        A("v_lshlrev_b32 v1, 4, v0")
        A(f"s_sub_u32 s62, s62, L_pc-{name}")
        A(f"s_subb_u32 s63, s63, 0")
        A(f"global_load_dwordx4 v[{vC}:{vC+3}], v1, s[62:63]")
    if stamps:
        A(f"s_memrealtime s[{sST}:{sST+1}]")
    if fused:
        A(f"s_memrealtime s[{sH}:{sH+1}]")
    A("v_lshrrev_b32 v1, 6, v0")
    A(f"v_and_b32 v{vLANE}, 63, v0")
    A(f"v_readfirstlane_b32 s{sW}, v1")
    A(f"v_and_b32 v{vR}, 15, v0")
    A(f"v_lshrrev_b32 v{vG}, 4, v{vLANE}")
    A(f"s_and_b32 s{sPR}, s2, 1")
    A(f"s_bfe_u32 s{sB}, s2, 0x10001")
    A(f"s_lshr_b32 s{sSI}, s2, 2")
    A(f"s_lshr_b32 s{sWI}, s{sW}, 1")
    A(f"s_lshl_b32 s{sWI}, s{sWI}, 6")
    A(f"s_add_u32 s{sWI}, s{sWI}, s{sSI}")
    A(f"s_lshl_b32 s62, s{sB}, 11")
    A(f"s_add_u32 s62, s62, s{sWI}")
    A(f"s_lshl_b32 s64, s62, 2")
    A(f"s_lshl_b32 s65, s{sB}, 2")
    A("s_waitcnt lgkmcnt(0)")
    A(f"s_add_u32 s{sBTA}, s14, s64")
    A(f"s_addc_u32 s{sBTA+1}, s15, 0")
    A(f"s_load_dword s{sEFF}, s[16:17], s65")
    for k in (4, 0, 1, 2, 3):
        A(f"s_load_dword s{sBT+k}, s[{sBTA}:{sBTA+1}], {k*1024}")
    A(f"s_and_b32 s{sKVH}, s{sW}, 1")
    A(f"s_lshl_b32 s62, s{sPR}, 1")
    A(f"s_add_u32 s{sKVH}, s{sKVH}, s62")
    A(f"v_lshrrev_b32 v5, 1, v{vR}")
    A(f"v_lshlrev_b32 v{vKOFF}, 10, v5")
    A(f"v_lshl_add_u32 v{vKOFF}, v{vG}, 5, v{vKOFF}")
    A(f"v_and_b32 v5, 1, v{vR}")
    A(f"v_lshl_add_u32 v{vKOFF}, v5, 4, v{vKOFF}")
    A(f"s_lshl_b32 s66, s{sKVH}, 8")
    A(f"v_add_u32 v{vKOFF}, s66, v{vKOFF}")
    A(f"v_lshlrev_b32 v{vVOFF}, 11, v{vG}")
    A(f"v_lshl_add_u32 v{vVOFF}, v{vR}, 4, v{vVOFF}")
    A(f"v_add_u32 v{vVOFF}, s66, v{vVOFF}")
    A(f"v_and_b32 v5, 7, v{vR}")
    A(f"v_lshlrev_b32 v14, 8, v5")
    A(f"v_lshl_add_u32 v14, v{vG}, 5, v14")
    A(f"v_lshrrev_b32 v5, 3, v{vR}")
    A(f"v_lshl_add_u32 v14, v5, 4, v14")
    A(f"s_lshl_b32 s67, s{sB}, 13")
    A(f"s_lshl_b32 s68, s{sKVH}, 11")
    A(f"s_add_u32 s67, s67, s68")
    srd(A, sK, 10, KV_BYTES)
    srd(A, sQ, 8, 16384)
    A(f"s_movk_i32 s{s8K}, 0x2000")
    A(f"s_mov_b32 s{sPB}, s{sWI}")
    A("s_waitcnt lgkmcnt(0)")
    if stamps:
        A(f"s_memrealtime s[{sST+2}:{sST+3}]")
    A(f"s_cmp_le_i32 s{sEFF}, 0")
    A(f"s_cselect_b32 s67, 0x80000000, s67")
    A(f"s_cselect_b32 s{sEFF}, 0x8000, s{sEFF}")
    A(f"s_min_i32 s{sEFF}, s{sEFF}, 0x8000")
    A(f"v_add_u32 v14, s67, v14")
    A(f"buffer_load_dwordx4 v[{vQ}:{vQ+3}], v14, s[{sQ}:{sQ+3}], 0 offen")
    A(f"buffer_load_dwordx4 v[{vQ+4}:{vQ+7}], v14, s[{sQ}:{sQ+3}], 0 offen offset:128")
    A.label("L_round")
    ks = [4, 0, 1, 2, 3]
    A(f"s_lshl_b32 s62, s{sPB}, 4")
    A(f"s_sub_i32 s62, s{sEFF}, s62")

    def slot_setup(s):
        k = ks[s]
        A(f"s_sub_i32 s{sNV+s}, s62, {k*4096}")
        A(f"s_lshl_b32 s{sOFF+s}, s{sBT+k}, 14")
        A(f"s_cmp_gt_i32 s{sNV+s}, 0")
        A(f"s_cselect_b32 s{sOFF+s}, s{sOFF+s}, 0x80000000")

    def kload(s):
        A(f"v_add_u32 v{vADDR}, s{sOFF+s}, v{vKOFF}")
        for n, (so, o) in enumerate([("0", 0), ("0", 128), (f"s{s8K}", 0), (f"s{s8K}", 128)]):
            r = vK + 16*s + 4*n
            A(f"buffer_load_dwordx4 v[{r}:{r+3}], v{vADDR}, s[{sK}:{sK+3}], {so} offen offset:{o} {pol}")

    def vload(s):
        A(f"v_add_u32 v{vADDR}, s{sOFF+s}, v{vVOFF}")
        for n, (so, o) in enumerate([("0", 0), ("0", 1024), (f"s{s8K}", 0), (f"s{s8K}", 1024)]):
            r = vV + 16*s + 4*n
            A(f"buffer_load_dwordx4 v[{r}:{r+3}], v{vADDR}, s[{sV}:{sV+3}], {so} offen offset:{o} {pol}")

    def qk_mfma(s):
        c = vC + 8*(s & 1)
        k = vK + 16*s
        A(f"v_mfma_f32_16x16x32_bf16 v[{c}:{c+3}], v[{k}:{k+3}], v[{vQ}:{vQ+3}], 0")
        A(f"v_mfma_f32_16x16x32_bf16 v[{c+4}:{c+7}], v[{k+8}:{k+11}], v[{vQ}:{vQ+3}], 0")
        A(f"v_mfma_f32_16x16x32_bf16 v[{c}:{c+3}], v[{k+4}:{k+7}], v[{vQ+4}:{vQ+7}], v[{c}:{c+3}]")
        A(f"v_mfma_f32_16x16x32_bf16 v[{c+4}:{c+7}], v[{k+12}:{k+15}], v[{vQ+4}:{vQ+7}], v[{c+4}:{c+7}]")

    def qk_post(s):
        c = vC + 8*(s & 1)
        x = vK + 16*s
        A(f"s_sub_i32 s63, s{sNV+s}, 8")
        A(f"v_cmp_gt_i32_e64 s[80:81], s{sNV+s}, v{vT0}")
        A(f"v_cmp_gt_i32_e64 s[82:83], s{sNV+s}, v{vT1}")
        A(f"v_add_f32_dpp v{x}, v{c+1}, v{c} row_ror:8 {DPPM}")
        A(f"v_add_f32_dpp v{x+1}, v{c+3}, v{c+2} row_ror:8 {DPPM}")
        A(f"v_add_f32_dpp v{x+2}, v{c+5}, v{c+4} row_ror:8 {DPPM}")
        A(f"v_add_f32_dpp v{x+3}, v{c+7}, v{c+6} row_ror:8 {DPPM}")
        A(f"v_cndmask_b32_e64 v{x}, v{vNEG}, v{x}, s[80:81]")
        A(f"v_cndmask_b32_e64 v{x+1}, v{vNEG}, v{x+1}, s[82:83]")
        A(f"v_cmp_gt_i32_e64 s[80:81], s63, v{vT0}")
        A(f"v_cmp_gt_i32_e64 s[82:83], s63, v{vT1}")
        A.nop(1)
        A(f"v_cndmask_b32_e64 v{x+2}, v{vNEG}, v{x+2}, s[80:81]")
        A(f"v_cndmask_b32_e64 v{x+3}, v{vNEG}, v{x+3}, s[82:83]")
        if s == 0:
            A(f"v_max3_f32 v14, v{x}, v{x+1}, v{x+2}")
            A(f"v_max_f32 v14, v14, v{x+3}")
        else:
            A(f"v_max3_f32 v14, v14, v{x}, v{x+1}")
            A(f"v_max3_f32 v14, v14, v{x+2}, v{x+3}")

    issued = [0]
    def W(idx):
        if prewrite and idx >= 20: idx += 2
        A(f"s_waitcnt vmcnt({issued[0] - 1 - idx})")
    def KL(s):
        kload(s); issued[0] += 4
    def VL(s):
        vload(s); issued[0] += 4

    for s in range(5):
        slot_setup(s)
        KL(s)
    srd(A, sV, 12, KV_BYTES)
    srd(A, sWS, 22, WS_BYTES)
    srd(A, sOUT, 18, 16384)
    srd(A, sDBG, 20, 256)
    A(f"s_mov_b32 s{sSC}, {SCALE:#x}")
    A(f"s_mov_b32 s{sSELLO}, 0x05040100")
    A(f"s_mov_b32 s{sSELHI}, 0x07060302")
    A(f"v_lshlrev_b32 v{vT0}, 1, v{vG}")
    A(f"v_or_b32 v{vT1}, 1, v{vT0}")
    A(f"v_mov_b32 v{vNEG}, {NEG:#x}")
    A(f"v_mov_b32 v{vONE}, 0x3f803f80")
    for i in range(1, 4):
        A(f"v_mov_b32 v{vONE+i}, v{vONE}")
    if fused:
        A(f"v_cmp_eq_u32 vcc, 0, v0")
        A(f"v_mov_b32 v94, 0")
        A(f"v_mov_b32 v95, 0")
        A(f"v_bfrev_b32 v42, 1")
        A(f"v_cndmask_b32_e64 v42, v42, 0, vcc")
    A(f"s_cmp_lg_u32 s{sPB}, s{sWI}")
    A(f"s_cbranch_scc1 L_noinit")
    A(f"v_mov_b32 v{vMRUN}, v{vNEG}")
    for i in range(36):
        A(f"v_mov_b32 v{vO+i}, 0")
    if fused:
        A(f"s_mul_i32 s86, s{sH}, 0x9E3779B9")
        A(f"s_mul_i32 s87, s{sH+1}, 0x7F4A7C15")
        A(f"s_add_u32 s86, s86, s87")
        A(f"s_mul_hi_u32 s87, s{sH}, 0x7F4A7C15")
        A(f"s_add_u32 s86, s86, s87")
        A(f"s_mul_i32 s{sH}, s{sH}, 0x7F4A7C15")
        A(f"s_or_b32 s{sH+1}, s86, 0x80000000")
    if prewrite:
        A(f"s_lshl_b32 s62, s{sB}, 1")
        A(f"s_add_u32 s62, s62, s{sPR}")
        A(f"s_lshl_b32 s63, s62, 6")
        A(f"s_add_u32 s63, s63, s{sSI}")
        A(f"s_lshl_b32 s63, s63, 13")
        A(f"v_lshlrev_b32 v34, 4, v0")
        A(f"v_add_u32 v34, s63, v34")
        A(f"buffer_store_dwordx4 v[{vO}:{vO+3}], v34, s[{sWS}:{sWS+3}], 0 offen {spol}")
        A(f"s_lshl_b32 s63, s2, 8")
        A(f"s_add_u32 s63, s63, {LSE_BASE}")
        A(f"v_lshlrev_b32 v35, 4, v0")
        A(f"v_cmp_gt_u32 vcc, 16, v0")
        A(f"v_add_u32 v35, s63, v35")
        A(f"v_bfrev_b32 v36, 1")
        A(f"v_cndmask_b32 v35, v36, v35, vcc")
        A(f"buffer_store_dwordx4 v[{vO}:{vO+3}], v35, s[{sWS}:{sWS+3}], 0 offen {spol}")
        issued[0] += 2
    A.label("L_noinit")
    if fused:
        A(f"v_mov_b32 v92, s{sH}")
        A(f"v_mov_b32 v93, s{sH+1}")
    W(3); qk_mfma(0)
    VL(0)
    W(7); qk_mfma(1); qk_post(0)
    W(11); qk_mfma(2); qk_post(1)
    VL(1)
    W(15); qk_mfma(3); qk_post(2)
    VL(2)
    W(19); qk_mfma(4); qk_post(3)
    VL(3)
    qk_post(4)
    VL(4)
    if fused and atom == 1:
        A(f"buffer_atomic_cmpswap_x2 v[92:95], v42, s[{sDBG}:{sDBG+3}], 0 offen sc0 sc1"); issued[0] += 1
    if fused and atom == 0:
        A(f"v_mov_b32 v92, 0x12345678")
        A(f"v_mov_b32 v93, 0x9abcdef1")
    if stamps: A(f"s_memrealtime s[{sST+4}:{sST+5}]")
    A(f"v_mov_b32 v15, v14")
    A.nop(2)
    A(f"v_permlane16_swap_b32 v14, v15")
    A(f"v_max_f32 v14, v14, v15")
    A(f"v_mov_b32 v15, v14")
    A.nop(2)
    A(f"v_permlane32_swap_b32 v14, v15")
    A(f"v_max_f32 v14, v14, v15")
    A(f"v_mul_f32 v14, s{sSC}, v14")
    A(f"v_max_f32 v{vMC}, v14, v{vMRUN}")
    A(f"s_cmp_lg_u32 s{sPB}, s{sWI}")
    A(f"s_cbranch_scc1 L_rescale")
    A.label("L_rescaled")
    A(f"v_mov_b32 v{vMRUN}, v{vMC}")
    pdst = {0: vPA, 1: vPB, 2: vPB+2, 3: vPC, 4: vPC+2}
    for s in range(5):
        x = vK + 16*s
        for q in range(4):
            A(f"v_fma_f32 v{x+q}, v{x+q}, s{sSC}, -v{vMC}")
        for q in range(4):
            A(f"v_exp_f32 v{x+q}, v{x+q}")
        if s > 0:
            xp = vK + 16*(s-1)
            A(f"v_cvt_pk_bf16_f32 v{pdst[s-1]}, v{xp}, v{xp+1}")
            A(f"v_cvt_pk_bf16_f32 v{pdst[s-1]+1}, v{xp+2}, v{xp+3}")
    A.nop(1)
    xp = vK + 64
    A(f"v_cvt_pk_bf16_f32 v{pdst[4]}, v{xp}, v{xp+1}")
    A(f"v_cvt_pk_bf16_f32 v{pdst[4]+1}, v{xp+2}, v{xp+3}")

    def perms(s, dst, stride, sub, irange=range(8)):
        v = vV + 16*s
        for i in irange:
            sel = sSELLO if (i & 1) == 0 else sSELHI
            for u in range(2):
                r0 = v + 8*u + (i >> 1)
                r1 = v + 8*u + 4 + (i >> 1)
                A(f"v_perm_b32 v{dst + stride*i + sub + u}, v{r1}, v{r0}, s{sel}")

    tA, tB, tC = vK, vK + 16, vK + 48
    W(23)
    perms(0, tA, 2, 0)
    A(f"v_mfma_f32_16x16x16_bf16 v[{vL}:{vL+3}], v[{vONE}:{vONE+1}], v[{vPA}:{vPA+1}], v[{vL}:{vL+3}]")
    for i in range(8):
        o = vO + 4*i
        A(f"v_mfma_f32_16x16x16_bf16 v[{o}:{o+3}], v[{tA+2*i}:{tA+2*i+1}], v[{vPA}:{vPA+1}], v[{o}:{o+3}]")
    W(27)
    perms(1, tB, 4, 0)
    W(31)
    perms(2, tB, 4, 2)
    A(f"v_mfma_f32_16x16x32_bf16 v[{vL}:{vL+3}], v[{vONE}:{vONE+3}], v[{vPB}:{vPB+3}], v[{vL}:{vL+3}]")
    for i in range(8):
        o = vO + 4*i
        A(f"v_mfma_f32_16x16x32_bf16 v[{o}:{o+3}], v[{tB+4*i}:{tB+4*i+3}], v[{vPB}:{vPB+3}], v[{o}:{o+3}]")
    A(f"v_mfma_f32_16x16x32_bf16 v[{vL}:{vL+3}], v[{vONE}:{vONE+3}], v[{vPC}:{vPC+3}], v[{vL}:{vL+3}]")
    ML = 32768
    A(f"v_lshlrev_b32 v14, 10, v{vG}")
    A(f"v_lshl_add_u32 v14, v{vR}, 7, v14")
    A(f"v_lshl_add_u32 v14, v{vR}, 4, v14")
    A(f"s_lshl_b32 s62, s{sW}, 12")
    A(f"v_add_u32 v14, s62, v14")
    for i in range(8):
        A(f"v_xor_b32 v{vC+i}, {16*i}, v14")
    A(f"s_and_b32 s64, s{sW}, 1")
    A(f"s_lshl_b32 s64, s64, 8")
    A(f"s_lshr_b32 s65, s{sW}, 1")
    A(f"s_lshl_b32 s65, s65, 3")
    A(f"s_add_u32 s64, s64, s65")
    A(f"v_lshlrev_b32 v15, 5, v{vR}")
    A(f"v_add_u32 v15, s64, v15")
    A(f"v_lshrrev_b32 v5, 8, v0")
    A(f"v_and_b32 v14, 255, v0")
    A(f"v_lshlrev_b32 v32, 12, v5")
    A(f"v_lshl_add_u32 v32, v14, 4, v32")
    A(f"v_bfe_u32 v14, v0, 3, 3")
    A(f"v_lshl_add_u32 v14, v5, 3, v14")
    A(f"v_lshlrev_b32 v33, 5, v14")
    A(f"v_mov_b32 v36, 0")
    A(f"s_lshl_b32 s62, s{sB}, 1")
    A(f"s_add_u32 s62, s62, s{sPR}")
    A(f"s_mul_i32 s63, s62, {GS}")
    A(f"s_mul_i32 s64, s{sSI}, {LAY['SS']}")
    A(f"s_add_u32 s63, s63, s64")
    A(f"v_lshrrev_b32 v34, 3, v0")
    A(f"v_mul_u32_u24 v34, {LAY['LS']}, v34")
    A(f"v_and_b32 v35, 7, v0")
    A(f"v_lshl_add_u32 v34, v35, 4, v34")
    A(f"v_add_u32 v34, s63, v34")
    A(f"s_lshl_b32 s64, s62, 14")
    A(f"s_lshl_b32 s65, s{sSI}, 4")
    A(f"s_add_u32 s64, s64, s65")
    A(f"s_add_u32 s64, s64, {LSE_BASE}")
    A(f"v_lshlrev_b32 v35, 10, v14")
    A(f"v_add_u32 v35, s64, v35")
    A(f"v_and_b32 v14, 0xc7, v0")
    A(f"v_cmp_eq_u32_e64 s[78:79], 0, v14")
    A(f"s_add_u32 s{sPB}, s{sPB}, 1280")
    A(f"s_lshl_b32 s64, s{sPB}, 4")
    A(f"s_mov_b32 s62, 0x00ff00ff")
    A(f"s_mov_b32 s63, 0x00ff00ff")
    W(35)
    perms(3, tC, 4, 0)
    W(39)
    if stamps: A(f"s_memrealtime s[{sST+6}:{sST+7}]")
    perms(4, tC, 4, 2, range(0, 2))
    for i in range(8):
        if i + 2 < 8:
            perms(4, tC, 4, 2, range(i+2, i+3))
        o = vO + 4*i
        A(f"v_mfma_f32_16x16x32_bf16 v[{o}:{o+3}], v[{tC+4*i}:{tC+4*i+3}], v[{vPC}:{vPC+3}], v[{o}:{o+3}]")
    A(f"s_cmp_lt_i32 s64, s{sEFF}")
    A(f"s_cbranch_scc1 L_again")
    A(f"s_mov_b64 exec, s[62:63]")
    A(f"v_mov_b32 v{vMC}, v{vL}")
    for i in range(8):
        o = vO + 4*i
        if i == 6: A.nop(1)
        A(f"ds_write_b128 v{vC+i}, v[{o}:{o+3}]")
    A(f"s_mov_b64 exec, 0xff")
    A(f"ds_write_b64 v15, v[{vMRUN}:{vMC}] offset:{ML}")
    if fused:
        A(f"s_cmp_ge_u32 s{sW}, 2")
        A(f"s_cbranch_scc1 L_nononce")
        A(f"s_mov_b64 exec, -1")
        consumer_addr(A)
        A(f"s_cmp_lg_u32 s{sW}, 0")
        A(f"s_cbranch_scc1 L_nononce")
        if atom == 2:
            A(f"s_mov_b64 exec, 1")
            A(f"buffer_atomic_cmpswap_x2 v[92:95], v36, s[{sDBG}:{sDBG+3}], 0 offen sc0 sc1")
        A("s_waitcnt vmcnt(0)")
        A(f"v_or_b32 v94, v92, v93")
        A(f"v_cmp_eq_u32 vcc, 0, v94")
        A(f"v_mov_b32 v94, s{sH}")
        A(f"v_mov_b32 v95, s{sH+1}")
        A(f"v_cndmask_b32 v92, v92, v94, vcc")
        A(f"v_cndmask_b32 v93, v93, v95, vcc")
        A(f"s_mov_b64 exec, 1")
        A(f"ds_write_b64 v36, v[92:93] offset:{ML+512}")
        A.label("L_nononce")
    A(f"s_mov_b64 exec, -1")
    A("s_waitcnt lgkmcnt(0)")
    A("s_barrier")
    m = 16
    D = 56
    A(f"ds_read_b128 v[{m}:{m+3}], v33 offset:{ML}")
    A(f"ds_read_b128 v[{m+4}:{m+7}], v33 offset:{ML+16}")
    if fused:
        A(f"ds_read_b64 v[40:41], v36 offset:{ML+512}")
    for k in range(4):
        A(f"ds_read_b128 v[{D+4*k}:{D+3+4*k}], v32 offset:{8192*k}")
    A(f"s_waitcnt lgkmcnt({5 if fused else 4})")
    A(f"v_max3_f32 v44, v{m}, v{m+2}, v{m+4}")
    A(f"v_max_f32 v44, v44, v{m+6}")
    for k in range(4):
        A(f"v_sub_f32 v{m+2*k}, v{m+2*k}, v44")
    for k in range(4):
        A(f"v_exp_f32 v{m+2*k}, v{m+2*k}")
    if fused:
        A(f"s_waitcnt lgkmcnt(4)")
        A(f"v_readfirstlane_b32 s{sH}, v40")
        A(f"v_readfirstlane_b32 s{sH+1}, v41")
    else:
        A.nop(1)
    A(f"v_mul_f32 v45, v{m}, v{m+1}")
    for k in range(1, 4):
        A(f"v_fmac_f32 v45, v{m+2*k}, v{m+2*k+1}")
    A(f"v_rcp_f32 v46, v45")
    A(f"v_log_f32 v47, v45")
    if fused:
        A(f"s_and_b32 s86, s{sH}, 0xfff")
        A(f"s_bfe_u32 s87, s{sH}, 0xc000c")
        A(f"s_lshr_b64 s[88:89], s[{sH}:{sH+1}], 24")
        A(f"s_bfe_u32 s89, s88, 0xc000c")
        A(f"s_and_b32 s88, s88, 0xfff")
        A(f"s_movk_i32 s80, 0xf000")
    else:
        A.nop(1)
    for k in range(4):
        A(f"v_mul_f32 v{m+2*k}, v{m+2*k}, v46")
    A(f"v_add_f32 v48, v44, v47")
    if fused:
        for q in range(4):
            A(f"v_mov_b32 v{72+q}, s{86+q}")
        A(f"v_mov_b32 v49, v40")
        A(f"v_mov_b32 v50, v41")
        A(f"v_mov_b32 v51, 0")
    for k in range(4):
        A(f"s_waitcnt lgkmcnt({3-k})")
        for q in range(4):
            if k == 0:
                A(f"v_mul_f32 v{52+q}, v{m}, v{D+q}")
            else:
                A(f"v_fmac_f32 v{52+q}, v{m+2*k}, v{D+4*k+q}")
    if fused:
        for q in range(4):
            A(f"v_and_or_b32 v{52+q}, v{52+q}, s80, v{72+q}")
    sp = spol if fused else spol2k
    A(f"buffer_store_dwordx4 v[52:55], v34, s[{sWS}:{sWS+3}], 0 offen {sp}")
    A(f"s_mov_b64 exec, s[78:79]")
    A(f"s_cbranch_execz L_nolse")
    A(f"buffer_store_dwordx4 v[48:51], v35, s[{sWS}:{sWS+3}], 0 offen {sp}")
    A.label("L_nolse")
    if fused:
        A(f"s_mov_b64 exec, -1")
        A(f"s_cmp_ge_u32 s{sW}, 2")
        A(f"s_cbranch_scc1 L_fin")
        consumer(A, True, "L_c", stamps, T, sleep, lpol, first_full, presleep)
        A.label("L_c_end")
        A.label("L_fin")
    if stamps:
        A("s_waitcnt vmcnt(0)")
        A(f"s_memrealtime s[{sST+10}:{sST+11}]")
        A("s_waitcnt lgkmcnt(0)")
        A("s_mov_b64 exec, 1")
        for i in range(6):
            A(f"v_mov_b32 v{16+i}, s{sST+2*i}")
        A("s_getreg_b32 s62, hwreg(HW_REG_XCC_ID)")
        A("v_mov_b32 v22, s62")
        A("v_mov_b32 v23, s72")
        A(f"s_lshl_b32 s62, s2, 3")
        A(f"s_add_u32 s62, s62, s{sW}")
        A(f"s_lshl_b32 s62, s62, 5")
        A(f"s_add_u32 s62, s62, {STAMP_BASE}")
        A(f"v_mov_b32 v1, s62")
        A(f"buffer_store_dwordx4 v[16:19], v1, s[{sWS}:{sWS+3}], 0 offen")
        A(f"buffer_store_dwordx4 v[20:23], v1, s[{sWS}:{sWS+3}], 0 offen offset:16")
    A.label("L_end")
    A("s_endpgm")
    A.label("L_again")
    for k in range(3):
        A(f"s_load_dword s{sBT+k}, s[{sBTA}:{sBTA+1}], {(5+k)*1024}")
    A("s_waitcnt vmcnt(0) lgkmcnt(0)")
    A.nop(8)
    A("s_branch L_round")
    A.label("L_rescale")
    A(f"v_sub_f32 v15, v{vMRUN}, v{vMC}")
    A(f"v_exp_f32 v15, v15")
    A.nop(1)
    for i in range(36):
        A(f"v_mul_f32 v{vO+i}, v{vO+i}, v15")
    A("s_branch L_rescaled")


def combine_kernel(A, name):
    A.L.append(f".globl {name}")
    A.L.append(".p2align 8")
    A.L.append(f".type {name},@function")
    A.label(name)
    A("s_load_dwordx2 s[18:19], s[0:1], 40")
    A("s_load_dwordx2 s[22:23], s[0:1], 56")
    A("s_cmp_ge_u32 s2, 256")
    A("s_cbranch_scc1 L2_end")
    A("v_lshrrev_b32 v1, 6, v0")
    A(f"v_and_b32 v{vLANE}, 63, v0")
    A(f"v_readfirstlane_b32 s{sW}, v1")
    A(f"s_and_b32 s{sPR}, s2, 1")
    A(f"s_bfe_u32 s{sB}, s2, 0x10001")
    A(f"s_lshr_b32 s{sSI}, s2, 2")
    consumer_addr(A)
    A("s_waitcnt lgkmcnt(0)")
    srd(A, sWS, 22, WS_BYTES)
    srd(A, sOUT, 18, 16384)
    consumer(A, False, "L2")
    A.label("L2_end")
    A("s_endpgm")


def kd(name, vgpr, sgpr=102):
    return f""".amdhsa_kernel {name}
  .amdhsa_next_free_vgpr {vgpr}
  .amdhsa_next_free_sgpr {sgpr}
  .amdhsa_accum_offset {vgpr}
  .amdhsa_group_segment_fixed_size 0
  .amdhsa_kernarg_size 64
  .amdhsa_user_sgpr_count 2
  .amdhsa_user_sgpr_kernarg_segment_ptr 1
  .amdhsa_system_sgpr_workgroup_id_x 1
.end_amdhsa_kernel
"""


def gen(fused=True, SS=8192, LS=128, **kw):
    LAY.update(SS=SS, LS=LS)
    A = G()
    k1 = NAME + "_kernel"
    k2 = "combine_kernel"
    lds = 32768 + 1024
    out = HEADER
    if fused:
        out += f"; @launch grid=(256,1,1) block=(512,1,1) lds={lds}\n"
    else:
        out += f"; @launch kernel={k1} grid=(256,1,1) block=(512,1,1) lds={lds}\n"
        out += f"; @launch kernel={k2} grid=(256,1,1) block=(128,1,1) lds=0\n"
    out += '.amdgcn_target "amdgcn-amd-amdhsa--gfx950"\n.text\n'
    main_kernel(A, k1, fused, **kw)
    if not fused:
        combine_kernel(A, k2)
    out += "\n".join(A.L) + "\n"
    out += f".fill (8192 - (. - {k1})) / 4, 4, 0xbf810000\n"
    out += '.section .rodata,"a"\n.p2align 6\n' + kd(k1, 256)
    if not fused:
        out += ".p2align 6\n" + kd(k2, 128)
    return out


if __name__ == "__main__":
    kw = eval("dict(" + (sys.argv[2] if len(sys.argv) > 2 else "") + ")")
    open(sys.argv[1], "w").write(gen(**kw))
```

```python
import sys, struct

NAME = "standalone__paged_block_table_kv_pagedattention__decode"
KV_BYTES = 4100 * 16384
WS_BYTES = 268697600
LSE_BASE = 3 << 20
LAY = dict(SS=8192, LS=128)
GS = 640 << 10
CNT_BASE = (3 << 20) + (128 << 10)
CNT_STRIDE = 4096 + 256
FLAG_OFF = 2048
STAMP_BASE = 4 << 20
NEG = 0xF149F2CA
SCALE = struct.unpack("<I", struct.pack("<f", 1.4426950408889634 / (128 ** 0.5)))[0]
HEADER = open("cdna_kernels/" + NAME + ".s.ref").read().split("; Override launch geometry")[0]


class G:
    def __init__(self):
        self.L = []
    def __call__(self, s):
        self.L.append("  " + s)
    def label(self, s):
        self.L.append(s + ":")
    def c(self, s):
        self.L.append("  ; " + s)
    def nop(self, n):
        while n > 0:
            k = min(n, 16)
            self(f"s_nop {k-1}")
            n -= k


def srd(A, d, lo, nbytes):
    A(f"s_mov_b32 s{d}, s{lo}")
    A(f"s_mov_b32 s{d+1}, s{lo+1}")
    A(f"s_mov_b32 s{d+2}, {nbytes}")
    A(f"s_mov_b32 s{d+3}, 0x20000")


DPPM = "row_mask:0xf bank_mask:0xf"
vLANE, vR, vG = 2, 3, 4
vKOFF, vVOFF, vADDR = 6, 7, 8
vT0, vT1, vNEG, vMRUN, vMC = 9, 10, 11, 12, 13
vQ = 16
vC = 24
vPA, vPB, vPC = 40, 44, 48
vONE = 52
vO = 56
vL = 88
vK = 96
vV = 176
sW, sPR, sB, sSI, sWI = 3, 4, 5, 6, 7
sK, sV, sWS, sQ, sOUT, sDBG = 24, 28, 32, 36, 40, 44
sBT = 48
sBTA = 54
sEFF, s8K, sSC, sSELLO, sSELHI = 56, 57, 58, 59, 60
sPB = 61
sOFF, sNV = 66, 71
sKVH = 77
sH = 84
sST = 90
cA, cB, cOUT, cFL, cLS, cG, cACC = 96, 97, 98, 99, 100, 104, 120


def consumer_addr(A):
    A.c("final-combine addresses: line si of the group, half = wave")
    A(f"s_lshl_b32 s62, s{sB}, 1")
    A(f"s_add_u32 s62, s62, s{sPR}")
    A(f"s_mul_i32 s63, s62, {CNT_STRIDE}")
    A(f"s_add_u32 s63, s63, {CNT_BASE}")
    A(f"v_mov_b32 v{cFL}, s63")
    A(f"s_mul_i32 s63, s62, {GS}")
    A(f"s_mul_i32 s64, s{sSI}, {LAY['LS']}")
    A(f"s_add_u32 s63, s63, s64")
    A(f"s_lshl_b32 s64, s{sW}, 6")
    A(f"s_add_u32 s63, s63, s64")
    A(f"v_lshrrev_b32 v124, 2, v{vLANE}")
    A(f"v_and_b32 v125, 3, v{vLANE}")
    A(f"v_mul_u32_u24 v{cA}, {LAY['SS']}, v124")
    A(f"v_lshl_add_u32 v{cA}, v125, 4, v{cA}")
    A(f"v_add_u32 v{cA}, s63, v{cA}")
    A(f"s_lshr_b32 s64, s{sSI}, 5")
    A(f"s_and_b32 s65, s{sSI}, 7")
    A(f"s_lshl_b32 s66, s62, 4")
    A(f"s_lshl_b32 s67, s64, 3")
    A(f"s_add_u32 s66, s66, s67")
    A(f"s_add_u32 s66, s66, s65")
    A(f"s_lshl_b32 s66, s66, 10")
    A(f"s_add_u32 s66, s66, {LSE_BASE}")
    A(f"v_lshl_add_u32 v{cB}, v125, 4, v124")
    A(f"v_lshlrev_b32 v{cB}, 4, v{cB}")
    A(f"v_add_u32 v{cB}, s66, v{cB}")
    A(f"s_mov_b32 s8, {16*LAY['SS']}")
    A(f"s_mov_b32 s9, {32*LAY['SS']}")
    A(f"s_mov_b32 s10, {48*LAY['SS']}")
    A(f"s_lshl_b32 s67, s{sPR}, 1")
    A(f"s_add_u32 s67, s67, s64")
    A(f"s_lshl_b32 s67, s67, 3")
    A(f"s_add_u32 s67, s67, s65")
    A(f"s_lshl_b32 s66, s{sB}, 5")
    A(f"s_add_u32 s67, s67, s66")
    A(f"s_lshl_b32 s67, s67, 7")
    A(f"s_bfe_u32 s66, s{sSI}, 0x20003")
    A(f"s_lshl_b32 s66, s66, 5")
    A(f"s_add_u32 s67, s67, s66")
    A(f"s_lshl_b32 s66, s{sW}, 2")
    A(f"s_xor_b32 s66, s66, s65")
    A(f"v_xor_b32 v{cOUT}, s66, v125")
    A(f"v_lshrrev_b32 v124, 4, v{vLANE}")
    A(f"v_lshl_add_u32 v{cOUT}, v124, 3, v{cOUT}")
    A(f"v_add_u32 v{cOUT}, s67, v{cOUT}")
    A(f"v_lshlrev_b32 v{cOUT}, 1, v{cOUT}")


def consumer(A, fused, lab, stamps=False, T=8, sleep=8, lpol="sc1", first_full=True, presleep=0):
    pol = lpol if fused else ""
    so = ["0", "s8", "s9", "s10"]
    t0, t1, t2 = 124, 125, 126
    def ld_l():
        A(f"buffer_load_dwordx4 v[{cLS}:{cLS+3}], v{cB}, s[{sWS}:{sWS+3}], 0 offen {pol}")
    def ld_g(j):
        r = cG + 4*j
        A(f"buffer_load_dwordx4 v[{r}:{r+3}], v{cA}, s[{sWS}:{sWS+3}], {so[j]} offen {pol}")
    if fused:
        pL = 62; pG = [64, 66, 68, 70]
        def P(x): return f"s[{x}:{x+1}]"
        def chk_l():
            A(f"v_xor_b32 v{t0}, s{sH}, v{cLS+1}")
            A(f"v_xor_b32 v{t1}, s{sH+1}, v{cLS+2}")
            A(f"v_or_b32 v{t0}, v{t0}, v{t1}")
            A(f"v_cmp_ne_u32_e64 {P(pL)}, 0, v{t0}")
        def chk_g(j):
            r = cG + 4*j
            for q in range(4):
                A(f"v_xor_b32 v{r+q}, s{86+q}, v{r+q}")
            A(f"v_or3_b32 v{t1}, v{r}, v{r+1}, v{r+2}")
            A(f"v_or_b32 v{t1}, v{t1}, v{r+3}")
            A(f"v_and_b32 v{t1}, 0xfff, v{t1}")
            A(f"v_cmp_ne_u32_e64 {P(pG[j])}, 0, v{t1}")
        A(f"s_mov_b32 s72, 0x100000")
        A(f"s_mov_b64 exec, 1")
        A.label(f"{lab}_flag")
        A(f"buffer_load_dword v{t0}, v{cFL}, s[{sWS}:{sWS+3}], 0 offen offset:{FLAG_OFF} sc1")
        A(f"s_sub_u32 s72, s72, 1")
        A(f"s_cbranch_scc1 {lab}_end")
        A("s_waitcnt vmcnt(0)")
        A(f"v_cmp_eq_u32 vcc, s{sH+1}, v{t0}")
        A(f"s_cbranch_vccnz {lab}_go")
        if sleep: A(f"s_sleep {sleep}")
        A(f"s_branch {lab}_flag")
        A.label(f"{lab}_go")
        if stamps:
            A(f"s_memrealtime s[{sST+4}:{sST+5}]")
            A(f"s_mov_b32 s72, 0x100000")
        A(f"s_mov_b64 exec, -1")
        ld_l()
        for j in range(4): ld_g(j)
        A("s_waitcnt vmcnt(4)")
        chk_l()
        for j in range(4):
            A(f"s_waitcnt vmcnt({3-j})")
            chk_g(j)
        A.label(f"{lab}_test")
        A(f"s_or_b64 s[74:75], {P(pL)}, {P(pG[0])}")
        A(f"s_or_b64 s[80:81], {P(pG[1])}, {P(pG[2])}")
        A(f"s_or_b64 s[74:75], s[74:75], {P(pG[3])}")
        A(f"s_or_b64 s[74:75], s[74:75], s[80:81]")
        A(f"s_cbranch_scc0 {lab}_ready")
        A(f"s_sub_u32 s72, s72, 1")
        A(f"s_cbranch_scc1 {lab}_end")
        A.label(f"{lab}_full")
        A(f"s_mov_b64 exec, {P(pL)}")
        A(f"s_cbranch_execz {lab}_s0")
        ld_l()
        for j in range(4):
            A.label(f"{lab}_s{j}")
            A(f"s_mov_b64 exec, {P(pG[j])}")
            A(f"s_cbranch_execz {lab}_s{j+1}")
            ld_g(j)
        A.label(f"{lab}_s4")
        A("s_waitcnt vmcnt(0)")
        A(f"s_mov_b64 exec, {P(pL)}")
        chk_l()
        for j in range(4):
            A(f"s_mov_b64 exec, {P(pG[j])}")
            chk_g(j)
        A(f"s_branch {lab}_test")
        A.label(f"{lab}_ready")
        A(f"s_mov_b64 exec, -1")
    else:
        ld_l()
        for j in range(4): ld_g(j)
        A("s_waitcnt vmcnt(4)")
    if stamps:
        A(f"s_memrealtime s[{sST+8}:{sST+9}]")
    L = cLS
    A(f"v_max_f32_dpp v{t0}, v{L}, v{L} quad_perm:[1,0,3,2] {DPPM}")
    A.nop(2)
    A(f"v_max_f32_dpp v{t0}, v{t0}, v{t0} quad_perm:[2,3,0,1] {DPPM}")
    A.nop(2)
    A(f"v_max_f32_dpp v{t0}, v{t0}, v{t0} row_ror:4 {DPPM}")
    A.nop(2)
    A(f"v_max_f32_dpp v{t0}, v{t0}, v{t0} row_ror:8 {DPPM}")
    A(f"v_mov_b32 v{t1}, v{t0}")
    A.nop(2)
    A(f"v_permlane16_swap_b32 v{t0}, v{t1}")
    A(f"v_max_f32 v{t0}, v{t0}, v{t1}")
    A(f"v_mov_b32 v{t1}, v{t0}")
    A.nop(2)
    A(f"v_permlane32_swap_b32 v{t0}, v{t1}")
    A(f"v_max_f32 v{t0}, v{t0}, v{t1}")
    A(f"v_sub_f32 v{t0}, v{L}, v{t0}")
    A(f"v_exp_f32 v{t0}, v{t0}")
    A.nop(2)
    if not fused:
        A("s_waitcnt vmcnt(0)")
    acc = cACC
    def wsum(j):
        op = "v_mul_f32_dpp" if j == 0 else "v_fmac_f32_dpp"
        for q in range(4):
            A(f"{op} v{acc+q}, v{t0}, v{cG+4*j+q} quad_perm:[{j},{j},{j},{j}] {DPPM}")
    A(f"v_add_f32_dpp v{t1}, v{t0}, v{t0} quad_perm:[1,0,3,2] {DPPM}")
    wsum(0)
    A(f"v_add_f32_dpp v{t1}, v{t1}, v{t1} quad_perm:[2,3,0,1] {DPPM}")
    wsum(1)
    A(f"v_add_f32_dpp v{t1}, v{t1}, v{t1} row_ror:4 {DPPM}")
    wsum(2)
    A(f"v_add_f32_dpp v{t1}, v{t1}, v{t1} row_ror:8 {DPPM}")
    wsum(3)
    A(f"v_mov_b32 v{t2}, v{t1}")
    A.nop(1)
    A(f"v_permlane16_swap_b32 v{acc}, v{acc+1}")
    A(f"v_permlane16_swap_b32 v{acc+2}, v{acc+3}")
    A(f"v_permlane16_swap_b32 v{t1}, v{t2}")
    A(f"v_add_f32 v{acc}, v{acc}, v{acc+1}")
    A(f"v_add_f32 v{acc+2}, v{acc+2}, v{acc+3}")
    A(f"v_add_f32 v{t1}, v{t1}, v{t2}")
    A(f"v_mov_b32 v{t2}, v{t1}")
    A(f"v_permlane32_swap_b32 v{acc}, v{acc+2}")
    A.nop(1)
    A(f"v_permlane32_swap_b32 v{t1}, v{t2}")
    A(f"v_add_f32 v{acc}, v{acc}, v{acc+2}")
    A(f"v_add_f32 v{t1}, v{t1}, v{t2}")
    A(f"v_rcp_f32 v{t1}, v{t1}")
    A(f"v_add_f32_dpp v{acc}, v{acc}, v{acc} row_ror:4 {DPPM}")
    A(f"s_mov_b32 s62, 0x000f000f")
    A(f"s_mov_b32 s63, 0x000f000f")
    A(f"v_add_f32_dpp v{acc}, v{acc}, v{acc} row_ror:8 {DPPM}")
    A(f"v_mul_f32 v{acc}, v{acc}, v{t1}")
    A(f"v_cvt_pk_bf16_f32 v{acc}, v{acc}, v{acc}")
    A(f"s_mov_b64 exec, s[62:63]")
    A(f"buffer_store_short v{acc}, v{cOUT}, s[{sOUT}:{sOUT+3}], 0 offen")


def main_kernel(A, name, fused, pol="nt", stamps=False, prefetch=True, T=8, sleep=8, spol="sc0 sc1", lpol="sc1", atom=1, spol2k="", first_full=True, presleep=0, prewrite=0, b1pos=0):
    A.L.append(f".globl {name}")
    A.L.append(".p2align 8")
    A.L.append(f".type {name},@function")
    A.label(name)
    A("s_load_dwordx16 s[8:23], s[0:1], 0")
    A("s_cmp_ge_u32 s2, 256")
    A("s_cbranch_scc1 L_end")
    if prefetch:
        A("s_getpc_b64 s[62:63]")
        A.label("L_pc")
        A("v_lshlrev_b32 v1, 4, v0")
        A(f"s_sub_u32 s62, s62, L_pc-{name}")
        A(f"s_subb_u32 s63, s63, 0")
        A(f"global_load_dwordx4 v[{vC}:{vC+3}], v1, s[62:63]")
    if stamps:
        A(f"s_memrealtime s[{sST}:{sST+1}]")
    if fused:
        A(f"s_memrealtime s[{sH}:{sH+1}]")
    A("v_lshrrev_b32 v1, 6, v0")
    A(f"v_and_b32 v{vLANE}, 63, v0")
    A(f"v_readfirstlane_b32 s{sW}, v1")
    A(f"v_and_b32 v{vR}, 15, v0")
    A(f"v_lshrrev_b32 v{vG}, 4, v{vLANE}")
    A(f"s_and_b32 s{sPR}, s2, 1")
    A(f"s_bfe_u32 s{sB}, s2, 0x10001")
    A(f"s_lshr_b32 s{sSI}, s2, 2")
    A(f"s_lshr_b32 s{sWI}, s{sW}, 1")
    A(f"s_lshl_b32 s{sWI}, s{sWI}, 6")
    A(f"s_add_u32 s{sWI}, s{sWI}, s{sSI}")
    A(f"s_lshl_b32 s62, s{sB}, 11")
    A(f"s_add_u32 s62, s62, s{sWI}")
    A(f"s_lshl_b32 s64, s62, 2")
    A(f"s_lshl_b32 s65, s{sB}, 2")
    A("s_waitcnt lgkmcnt(0)")
    A(f"s_add_u32 s{sBTA}, s14, s64")
    A(f"s_addc_u32 s{sBTA+1}, s15, 0")
    A(f"s_load_dword s{sEFF}, s[16:17], s65")
    for k in (4, 0, 1, 2, 3):
        A(f"s_load_dword s{sBT+k}, s[{sBTA}:{sBTA+1}], {k*1024}")
    if fused:
        A(f"s_or_b32 s62, s2, s{sW}")
        A(f"s_cbranch_scc0 L_mknonce")
        A.label("L_nonced")
    A(f"s_and_b32 s{sKVH}, s{sW}, 1")
    A(f"s_lshl_b32 s62, s{sPR}, 1")
    A(f"s_add_u32 s{sKVH}, s{sKVH}, s62")
    A(f"v_lshrrev_b32 v5, 1, v{vR}")
    A(f"v_lshlrev_b32 v{vKOFF}, 10, v5")
    A(f"v_lshl_add_u32 v{vKOFF}, v{vG}, 5, v{vKOFF}")
    A(f"v_and_b32 v5, 1, v{vR}")
    A(f"v_lshl_add_u32 v{vKOFF}, v5, 4, v{vKOFF}")
    A(f"s_lshl_b32 s66, s{sKVH}, 8")
    A(f"v_add_u32 v{vKOFF}, s66, v{vKOFF}")
    A(f"v_lshlrev_b32 v{vVOFF}, 11, v{vG}")
    A(f"v_lshl_add_u32 v{vVOFF}, v{vR}, 4, v{vVOFF}")
    A(f"v_add_u32 v{vVOFF}, s66, v{vVOFF}")
    A(f"v_and_b32 v5, 7, v{vR}")
    A(f"v_lshlrev_b32 v14, 8, v5")
    A(f"v_lshl_add_u32 v14, v{vG}, 5, v14")
    A(f"v_lshrrev_b32 v5, 3, v{vR}")
    A(f"v_lshl_add_u32 v14, v5, 4, v14")
    A(f"s_lshl_b32 s67, s{sB}, 13")
    A(f"s_lshl_b32 s68, s{sKVH}, 11")
    A(f"s_add_u32 s67, s67, s68")
    srd(A, sK, 10, KV_BYTES)
    srd(A, sQ, 8, 16384)
    A(f"s_movk_i32 s{s8K}, 0x2000")
    A(f"s_mov_b32 s{sPB}, s{sWI}")
    A("s_waitcnt lgkmcnt(0)")
    if stamps:
        A(f"s_memrealtime s[{sST+2}:{sST+3}]")
    A(f"s_cmp_le_i32 s{sEFF}, 0")
    A(f"s_cselect_b32 s67, 0x80000000, s67")
    A(f"s_cselect_b32 s{sEFF}, 0x8000, s{sEFF}")
    A(f"s_min_i32 s{sEFF}, s{sEFF}, 0x8000")
    A(f"v_add_u32 v14, s67, v14")
    A(f"buffer_load_dwordx4 v[{vQ}:{vQ+3}], v14, s[{sQ}:{sQ+3}], 0 offen")
    A(f"buffer_load_dwordx4 v[{vQ+4}:{vQ+7}], v14, s[{sQ}:{sQ+3}], 0 offen offset:128")
    A.label("L_round")
    ks = [4, 0, 1, 2, 3]
    A(f"s_lshl_b32 s62, s{sPB}, 4")
    A(f"s_sub_i32 s62, s{sEFF}, s62")

    def slot_setup(s):
        k = ks[s]
        A(f"s_sub_i32 s{sNV+s}, s62, {k*4096}")
        A(f"s_lshl_b32 s{sOFF+s}, s{sBT+k}, 14")
        A(f"s_cmp_gt_i32 s{sNV+s}, 0")
        A(f"s_cselect_b32 s{sOFF+s}, s{sOFF+s}, 0x80000000")

    def kload(s):
        A(f"v_add_u32 v{vADDR}, s{sOFF+s}, v{vKOFF}")
        for n, (so, o) in enumerate([("0", 0), ("0", 128), (f"s{s8K}", 0), (f"s{s8K}", 128)]):
            r = vK + 16*s + 4*n
            A(f"buffer_load_dwordx4 v[{r}:{r+3}], v{vADDR}, s[{sK}:{sK+3}], {so} offen offset:{o} {pol}")

    def vload(s):
        A(f"v_add_u32 v{vADDR}, s{sOFF+s}, v{vVOFF}")
        for n, (so, o) in enumerate([("0", 0), ("0", 1024), (f"s{s8K}", 0), (f"s{s8K}", 1024)]):
            r = vV + 16*s + 4*n
            A(f"buffer_load_dwordx4 v[{r}:{r+3}], v{vADDR}, s[{sV}:{sV+3}], {so} offen offset:{o} {pol}")

    def qk_mfma(s):
        c = vC + 8*(s & 1)
        k = vK + 16*s
        A(f"v_mfma_f32_16x16x32_bf16 v[{c}:{c+3}], v[{k}:{k+3}], v[{vQ}:{vQ+3}], 0")
        A(f"v_mfma_f32_16x16x32_bf16 v[{c+4}:{c+7}], v[{k+8}:{k+11}], v[{vQ}:{vQ+3}], 0")
        A(f"v_mfma_f32_16x16x32_bf16 v[{c}:{c+3}], v[{k+4}:{k+7}], v[{vQ+4}:{vQ+7}], v[{c}:{c+3}]")
        A(f"v_mfma_f32_16x16x32_bf16 v[{c+4}:{c+7}], v[{k+12}:{k+15}], v[{vQ+4}:{vQ+7}], v[{c+4}:{c+7}]")

    def qk_post(s):
        c = vC + 8*(s & 1)
        x = vK + 16*s
        A(f"s_sub_i32 s63, s{sNV+s}, 8")
        A(f"v_cmp_gt_i32_e64 s[80:81], s{sNV+s}, v{vT0}")
        A(f"v_cmp_gt_i32_e64 s[82:83], s{sNV+s}, v{vT1}")
        A(f"v_add_f32_dpp v{x}, v{c+1}, v{c} row_ror:8 {DPPM}")
        A(f"v_add_f32_dpp v{x+1}, v{c+3}, v{c+2} row_ror:8 {DPPM}")
        A(f"v_add_f32_dpp v{x+2}, v{c+5}, v{c+4} row_ror:8 {DPPM}")
        A(f"v_add_f32_dpp v{x+3}, v{c+7}, v{c+6} row_ror:8 {DPPM}")
        A(f"v_cndmask_b32_e64 v{x}, v{vNEG}, v{x}, s[80:81]")
        A(f"v_cndmask_b32_e64 v{x+1}, v{vNEG}, v{x+1}, s[82:83]")
        A(f"v_cmp_gt_i32_e64 s[80:81], s63, v{vT0}")
        A(f"v_cmp_gt_i32_e64 s[82:83], s63, v{vT1}")
        A.nop(1)
        A(f"v_cndmask_b32_e64 v{x+2}, v{vNEG}, v{x+2}, s[80:81]")
        A(f"v_cndmask_b32_e64 v{x+3}, v{vNEG}, v{x+3}, s[82:83]")
        if s == 0:
            A(f"v_max3_f32 v14, v{x}, v{x+1}, v{x+2}")
            A(f"v_max_f32 v14, v14, v{x+3}")
        else:
            A(f"v_max3_f32 v14, v14, v{x}, v{x+1}")
            A(f"v_max3_f32 v14, v14, v{x+2}, v{x+3}")

    issued = [0]
    def W(idx):
        if prewrite and idx >= 20: idx += 2
        A(f"s_waitcnt vmcnt({issued[0] - 1 - idx})")
    def KL(s):
        kload(s); issued[0] += 4
    def VL(s):
        vload(s); issued[0] += 4

    for s in range(5):
        slot_setup(s)
        KL(s)
    srd(A, sV, 12, KV_BYTES)
    srd(A, sWS, 22, WS_BYTES)
    srd(A, sOUT, 18, 16384)
    srd(A, sDBG, 20, 256)
    A(f"s_mov_b32 s{sSC}, {SCALE:#x}")
    A(f"s_mov_b32 s{sSELLO}, 0x05040100")
    A(f"s_mov_b32 s{sSELHI}, 0x07060302")
    A(f"v_lshlrev_b32 v{vT0}, 1, v{vG}")
    A(f"v_or_b32 v{vT1}, 1, v{vT0}")
    A(f"v_mov_b32 v{vNEG}, {NEG:#x}")
    A(f"v_mov_b32 v{vONE}, 0x3f803f80")
    for i in range(1, 4):
        A(f"v_mov_b32 v{vONE+i}, v{vONE}")
    A(f"s_cmp_lg_u32 s{sPB}, s{sWI}")
    A(f"s_cbranch_scc1 L_noinit")
    A(f"v_mov_b32 v{vMRUN}, v{vNEG}")
    for i in range(36):
        A(f"v_mov_b32 v{vO+i}, 0")
    if prewrite:
        A(f"s_lshl_b32 s62, s{sB}, 1")
        A(f"s_add_u32 s62, s62, s{sPR}")
        A(f"s_lshl_b32 s63, s62, 6")
        A(f"s_add_u32 s63, s63, s{sSI}")
        A(f"s_lshl_b32 s63, s63, 13")
        A(f"v_lshlrev_b32 v34, 4, v0")
        A(f"v_add_u32 v34, s63, v34")
        A(f"buffer_store_dwordx4 v[{vO}:{vO+3}], v34, s[{sWS}:{sWS+3}], 0 offen {spol}")
        A(f"s_lshl_b32 s63, s2, 8")
        A(f"s_add_u32 s63, s63, {LSE_BASE}")
        A(f"v_lshlrev_b32 v35, 4, v0")
        A(f"v_cmp_gt_u32 vcc, 16, v0")
        A(f"v_add_u32 v35, s63, v35")
        A(f"v_bfrev_b32 v36, 1")
        A(f"v_cndmask_b32 v35, v36, v35, vcc")
        A(f"buffer_store_dwordx4 v[{vO}:{vO+3}], v35, s[{sWS}:{sWS+3}], 0 offen {spol}")
        issued[0] += 2
    A.label("L_noinit")
    W(3); qk_mfma(0)
    VL(0)
    W(7); qk_mfma(1); qk_post(0)
    W(11); qk_mfma(2); qk_post(1)
    VL(1)
    W(15); qk_mfma(3); qk_post(2)
    VL(2)
    W(19); qk_mfma(4); qk_post(3)
    VL(3)
    qk_post(4)
    VL(4)
    def B1(pos):
        if fused and pos == b1pos:
            A(f"s_add_u32 s64, s{sPB}, 1280")
            A(f"s_lshl_b32 s64, s64, 4")
            A(f"s_cmp_lt_i32 s64, s{sEFF}")
            A(f"s_cselect_b32 s64, 0, s{sW}")
            A(f"s_cmp_lt_u32 s64, 4")
            A(f"s_cbranch_scc1 L_nob1")
            A(f"s_barrier")
            A(f"v_mov_b32 v43, 0")
            A(f"ds_read_b64 v[92:93], v43 offset:{32768+512}")
            A.label("L_nob1")
    B1(0)
    if stamps and not fused: A(f"s_memrealtime s[{sST+4}:{sST+5}]")
    A(f"v_mov_b32 v15, v14")
    A.nop(2)
    A(f"v_permlane16_swap_b32 v14, v15")
    A(f"v_max_f32 v14, v14, v15")
    A(f"v_mov_b32 v15, v14")
    A.nop(2)
    A(f"v_permlane32_swap_b32 v14, v15")
    A(f"v_max_f32 v14, v14, v15")
    A(f"v_mul_f32 v14, s{sSC}, v14")
    A(f"v_max_f32 v{vMC}, v14, v{vMRUN}")
    A(f"s_cmp_lg_u32 s{sPB}, s{sWI}")
    A(f"s_cbranch_scc1 L_rescale")
    A.label("L_rescaled")
    A(f"v_mov_b32 v{vMRUN}, v{vMC}")
    pdst = {0: vPA, 1: vPB, 2: vPB+2, 3: vPC, 4: vPC+2}
    for s in range(5):
        x = vK + 16*s
        for q in range(4):
            A(f"v_fma_f32 v{x+q}, v{x+q}, s{sSC}, -v{vMC}")
        for q in range(4):
            A(f"v_exp_f32 v{x+q}, v{x+q}")
        if s > 0:
            xp = vK + 16*(s-1)
            A(f"v_cvt_pk_bf16_f32 v{pdst[s-1]}, v{xp}, v{xp+1}")
            A(f"v_cvt_pk_bf16_f32 v{pdst[s-1]+1}, v{xp+2}, v{xp+3}")
    A.nop(1)
    xp = vK + 64
    A(f"v_cvt_pk_bf16_f32 v{pdst[4]}, v{xp}, v{xp+1}")
    A(f"v_cvt_pk_bf16_f32 v{pdst[4]+1}, v{xp+2}, v{xp+3}")

    def perms(s, dst, stride, sub, irange=range(8)):
        v = vV + 16*s
        for i in irange:
            sel = sSELLO if (i & 1) == 0 else sSELHI
            for u in range(2):
                r0 = v + 8*u + (i >> 1)
                r1 = v + 8*u + 4 + (i >> 1)
                A(f"v_perm_b32 v{dst + stride*i + sub + u}, v{r1}, v{r0}, s{sel}")

    tA, tB, tC = vK, vK + 16, vK + 48
    W(23)
    B1(1)
    perms(0, tA, 2, 0)
    A(f"v_mfma_f32_16x16x16_bf16 v[{vL}:{vL+3}], v[{vONE}:{vONE+1}], v[{vPA}:{vPA+1}], v[{vL}:{vL+3}]")
    for i in range(8):
        o = vO + 4*i
        A(f"v_mfma_f32_16x16x16_bf16 v[{o}:{o+3}], v[{tA+2*i}:{tA+2*i+1}], v[{vPA}:{vPA+1}], v[{o}:{o+3}]")
    W(27)
    perms(1, tB, 4, 0)
    W(31)
    B1(2)
    perms(2, tB, 4, 2)
    A(f"v_mfma_f32_16x16x32_bf16 v[{vL}:{vL+3}], v[{vONE}:{vONE+3}], v[{vPB}:{vPB+3}], v[{vL}:{vL+3}]")
    for i in range(8):
        o = vO + 4*i
        A(f"v_mfma_f32_16x16x32_bf16 v[{o}:{o+3}], v[{tB+4*i}:{tB+4*i+3}], v[{vPB}:{vPB+3}], v[{o}:{o+3}]")
    A(f"v_mfma_f32_16x16x32_bf16 v[{vL}:{vL+3}], v[{vONE}:{vONE+3}], v[{vPC}:{vPC+3}], v[{vL}:{vL+3}]")
    ML = 32768
    A(f"v_lshlrev_b32 v14, 10, v{vG}")
    A(f"v_lshl_add_u32 v14, v{vR}, 7, v14")
    A(f"v_lshl_add_u32 v14, v{vR}, 4, v14")
    A(f"s_lshl_b32 s62, s{sW}, 12")
    A(f"v_add_u32 v14, s62, v14")
    for i in range(8):
        A(f"v_xor_b32 v{vC+i}, {16*i}, v14")
    A(f"s_and_b32 s64, s{sW}, 1")
    A(f"s_lshl_b32 s64, s64, 8")
    A(f"s_lshr_b32 s65, s{sW}, 1")
    A(f"s_lshl_b32 s65, s65, 3")
    A(f"s_add_u32 s64, s64, s65")
    A(f"v_lshlrev_b32 v15, 5, v{vR}")
    A(f"v_add_u32 v15, s64, v15")
    if fused:
        A(f"v_mov_b32 v5, 0")
        A(f"v_and_b32 v38, 255, v0")
    else:
        A(f"v_lshrrev_b32 v5, 8, v0")
        A(f"v_mov_b32 v38, v0")
    A(f"v_and_b32 v14, 255, v0")
    A(f"v_lshlrev_b32 v32, 12, v5")
    A(f"v_lshl_add_u32 v32, v14, 4, v32")
    A(f"v_bfe_u32 v14, v0, 3, 3")
    A(f"v_lshl_add_u32 v14, v5, 3, v14")
    A(f"v_lshlrev_b32 v33, 5, v14")
    A(f"v_mov_b32 v36, 0")
    A(f"s_lshl_b32 s62, s{sB}, 1")
    A(f"s_add_u32 s62, s62, s{sPR}")
    A(f"s_mul_i32 s63, s62, {GS}")
    A(f"s_mul_i32 s64, s{sSI}, {LAY['SS']}")
    A(f"s_add_u32 s63, s63, s64")
    A(f"v_lshrrev_b32 v34, 3, v38")
    A(f"v_mul_u32_u24 v34, {LAY['LS']}, v34")
    A(f"v_and_b32 v35, 7, v0")
    A(f"v_lshl_add_u32 v34, v35, 4, v34")
    A(f"v_add_u32 v34, s63, v34")
    A(f"s_lshl_b32 s64, s62, 14")
    A(f"s_lshl_b32 s65, s{sSI}, 4")
    A(f"s_add_u32 s64, s64, s65")
    A(f"s_add_u32 s64, s64, {LSE_BASE}")
    A(f"v_lshlrev_b32 v35, 10, v14")
    A(f"v_add_u32 v35, s64, v35")
    A(f"v_and_b32 v14, 0xc7, v0")
    A(f"v_cmp_eq_u32_e64 s[78:79], 0, v14")
    W(35)
    B1(3)
    A(f"s_add_u32 s{sPB}, s{sPB}, 1280")
    A(f"s_lshl_b32 s64, s{sPB}, 4")
    A(f"s_mov_b32 s62, 0x00ff00ff")
    A(f"s_mov_b32 s63, 0x00ff00ff")
    perms(3, tC, 4, 0)
    def tagsetup():
        A("s_waitcnt lgkmcnt(0)")
        A(f"v_readfirstlane_b32 s{sH}, v92")
        A(f"v_readfirstlane_b32 s{sH+1}, v93")
        A(f"s_movk_i32 s80, 0xf000")
        A(f"s_mov_b32 s81, {32*LAY['LS']}")
        A(f"s_and_b32 s86, s{sH}, 0xfff")
        A(f"s_bfe_u32 s87, s{sH}, 0xc000c")
        A(f"s_lshr_b64 s[88:89], s[{sH}:{sH+1}], 24")
        A(f"s_bfe_u32 s89, s88, 0xc000c")
        A(f"s_and_b32 s88, s88, 0xfff")
    if fused and b1pos != 4: tagsetup()
    W(39)
    if stamps: A(f"s_memrealtime s[{sST+6}:{sST+7}]")
    if fused and b1pos == 4:
        A(f"s_cmp_lt_i32 s64, s{sEFF}")
        A(f"s_cselect_b32 s65, 0, s{sW}")
        A(f"s_cmp_lt_u32 s65, 4")
        A(f"s_cbranch_scc1 L_nob1")
        A(f"s_barrier")
        A(f"v_mov_b32 v43, 0")
        A(f"ds_read_b64 v[92:93], v43 offset:{32768+512}")
        A.label("L_nob1")
    perms(4, tC, 4, 2, range(0, 2))
    for i in range(8):
        if i + 2 < 8:
            perms(4, tC, 4, 2, range(i+2, i+3))
        o = vO + 4*i
        A(f"v_mfma_f32_16x16x32_bf16 v[{o}:{o+3}], v[{tC+4*i}:{tC+4*i+3}], v[{vPC}:{vPC+3}], v[{o}:{o+3}]")
    if fused and b1pos == 4: tagsetup()
    A(f"s_cmp_lt_i32 s64, s{sEFF}")
    A(f"s_cbranch_scc1 L_again")
    A(f"s_mov_b64 exec, s[62:63]")
    A(f"v_mov_b32 v{vMC}, v{vL}")
    for i in range(8):
        o = vO + 4*i
        if i == 6: A.nop(1)
        A(f"ds_write_b128 v{vC+i}, v[{o}:{o+3}]")
    A(f"s_mov_b64 exec, 0xff")
    A(f"ds_write_b64 v15, v[{vMRUN}:{vMC}] offset:{ML}")
    if fused:
        A(f"s_mov_b64 exec, -1")
        for q in range(4):
            A(f"v_mov_b32 v{72+q}, s{86+q}")
        for h in range(2):
            A(f"v_mov_b32 v{49+36*h}, s{sH}")
            A(f"v_mov_b32 v{50+36*h}, s{sH+1}")
            A(f"v_mov_b32 v{51+36*h}, 0")
    m = 16
    D = 56
    def tags():
        A(f"s_and_b32 s86, s{sH}, 0xfff")
        A(f"s_bfe_u32 s87, s{sH}, 0xc000c")
        A(f"s_lshr_b64 s[88:89], s[{sH}:{sH+1}], 24")
        A(f"s_bfe_u32 s89, s88, 0xc000c")
        A(f"s_and_b32 s88, s88, 0xfff")
    def reduce_stage(nh):
        for h in range(nh):
            A(f"ds_read_b128 v[{m+24*h*4}:{m+24*h*4+3}], v33 offset:{ML+256*h}")
            A(f"ds_read_b128 v[{m+24*h*4+4}:{m+24*h*4+7}], v33 offset:{ML+16+256*h}")
        for h in range(nh):
            for k in range(4):
                d = D + 72*h + 4*k
                A(f"ds_read_b128 v[{d}:{d+3}], v32 offset:{8192*k + 4096*h}")
        sp = spol if fused else spol2k
        for h in range(nh):
            mm = m + 96*h
            t = 44 + 36*h
            A(f"s_waitcnt lgkmcnt({4*nh + 2*(nh-1-h)})")
            A(f"v_max3_f32 v{t}, v{mm}, v{mm+2}, v{mm+4}")
            A(f"v_max_f32 v{t}, v{t}, v{mm+6}")
            for k in range(4):
                A(f"v_sub_f32 v{mm+2*k}, v{mm+2*k}, v{t}")
            for k in range(4):
                A(f"v_exp_f32 v{mm+2*k}, v{mm+2*k}")
            A.nop(1)
            A(f"v_mul_f32 v{t+1}, v{mm}, v{mm+1}")
            for k in range(1, 4):
                A(f"v_fmac_f32 v{t+1}, v{mm+2*k}, v{mm+2*k+1}")
            A(f"v_rcp_f32 v{t+2}, v{t+1}")
            A(f"v_log_f32 v{t+3}, v{t+1}")
            A.nop(1)
            for k in range(4):
                A(f"v_mul_f32 v{mm+2*k}, v{mm+2*k}, v{t+2}")
            A(f"v_add_f32 v{48+36*h}, v{t}, v{t+3}")
        for h in range(nh):
            mm = m + 96*h
            o = 52 + 36*h
            for k in range(4):
                A(f"s_waitcnt lgkmcnt({4*(nh-1-h) + 3-k})")
                for q in range(4):
                    d = D + 72*h + 4*k + q
                    if k == 0:
                        A(f"v_mul_f32 v{o+q}, v{mm}, v{d}")
                    else:
                        A(f"v_fmac_f32 v{o+q}, v{mm+2*k}, v{d}")
            if fused:
                for q in range(4):
                    A(f"v_and_or_b32 v{o+q}, v{o+q}, s80, v{72+q}")
            so = "0" if h == 0 else "s81"
            A(f"buffer_store_dwordx4 v[{o}:{o+3}], v34, s[{sWS}:{sWS+3}], {so} offen {sp}")
        A(f"s_mov_b64 exec, s[78:79]")
        A(f"s_cbranch_execz L_nolse")
        for h in range(nh):
            so = "0" if h == 0 else f"s{s8K}"
            A(f"buffer_store_dwordx4 v[{48+36*h}:{51+36*h}], v35, s[{sWS}:{sWS+3}], {so} offen {sp}")
        A.label("L_nolse")
    if not fused:
        A(f"s_mov_b64 exec, -1")
        A("s_waitcnt lgkmcnt(0)")
        A("s_barrier")
        reduce_stage(1)
    else:
        A(f"s_cmp_lt_u32 s{sW}, 4")
        A(f"s_cbranch_scc1 L_early")
        A(f"s_mov_b64 exec, 1")
        A(f"v_mov_b32 v37, 1")
        A("s_waitcnt lgkmcnt(0)")
        A(f"ds_add_u32 v36, v37 offset:{ML+520}")
        A(f"s_mov_b64 exec, -1")
        A.label("L_ljoin")
        A(f"ds_read_b32 v37, v36 offset:{ML+520}")
        A("s_waitcnt lgkmcnt(0)")
        A(f"v_cmp_eq_u32 vcc, 4, v37")
        A(f"s_cbranch_vccz L_ljoin")
        reduce_stage(2)
        A(f"s_branch L_fin")
        A.label("L_early")
        A(f"s_mov_b64 exec, -1")
        A(f"s_cmp_ge_u32 s{sW}, 3")
        A(f"s_cbranch_scc1 L_w3")
        consumer_addr(A)
        A(f"s_cmp_eq_u32 s{sW}, 2")
        A(f"s_cbranch_scc1 L_w2")
        A(f"s_mov_b64 exec, 1")
        A(f"s_mov_b32 s72, 0x100000")
        A.label("L_getnonce")
        A(f"buffer_load_dwordx2 v[92:93], v36, s[{sDBG}:{sDBG+3}], 0 offen offset:192 sc1")
        A(f"s_sub_u32 s72, s72, 1")
        A(f"s_cbranch_scc1 L_gotnonce")
        A("s_waitcnt vmcnt(0)")
        A(f"v_cmp_eq_u32 vcc, 0, v93")
        A(f"s_cbranch_vccnz L_getnonce")
        A.label("L_gotnonce")
        A("s_waitcnt vmcnt(0)")
        A(f"v_mov_b32 v94, 0")
        A(f"v_readfirstlane_b32 s{sH}, v92")
        A(f"v_readfirstlane_b32 s{sH+1}, v93")
        A(f"ds_write_b96 v36, v[92:94] offset:{ML+512}")
        tags()
        A("s_waitcnt lgkmcnt(0)")
        A(f"s_barrier")
        consumer(A, True, "L_c", stamps, T, sleep, lpol, first_full, presleep)
        A(f"s_branch L_fin")
        A.label("L_w2")
        A(f"s_mov_b64 exec, 1")
        A(f"v_mov_b32 v94, 1")
        A("s_waitcnt lgkmcnt(0)")
        A(f"s_barrier")
        if stamps: A(f"s_memrealtime s[{sST+4}:{sST+5}]")
        A(f"buffer_atomic_add v94, v{cFL}, s[{sWS}:{sWS+3}], 0 offen sc0 sc1")
        A(f"ds_read_b32 v95, v36 offset:{ML+516}")
        A("s_waitcnt vmcnt(0) lgkmcnt(0)")
        if stamps: A(f"s_memrealtime s[{sST+8}:{sST+9}]")
        A(f"v_cmp_eq_u32 vcc, 63, v94")
        A(f"s_cbranch_vccz L_fin")
        A(f"buffer_store_dword v95, v{cFL}, s[{sWS}:{sWS+3}], 0 offen offset:{FLAG_OFF} sc0 sc1")
        A(f"s_branch L_fin")
        A.label("L_w3")
        A("s_waitcnt lgkmcnt(0)")
        A(f"s_barrier")
        A.label("L_c_end")
        A.label("L_fin")
    if stamps:
        A("s_waitcnt vmcnt(0)")
        A(f"s_memrealtime s[{sST+10}:{sST+11}]")
        A("s_waitcnt lgkmcnt(0)")
        A("s_mov_b64 exec, 1")
        for i in range(6):
            A(f"v_mov_b32 v{16+i}, s{sST+2*i}")
        A("s_getreg_b32 s62, hwreg(HW_REG_XCC_ID)")
        A("v_mov_b32 v22, s62")
        A("v_mov_b32 v23, s72")
        A(f"s_lshl_b32 s62, s2, 3")
        A(f"s_add_u32 s62, s62, s{sW}")
        A(f"s_lshl_b32 s62, s62, 5")
        A(f"s_add_u32 s62, s62, {STAMP_BASE}")
        A(f"v_mov_b32 v1, s62")
        A(f"buffer_store_dwordx4 v[16:19], v1, s[{sWS}:{sWS+3}], 0 offen")
        A(f"buffer_store_dwordx4 v[20:23], v1, s[{sWS}:{sWS+3}], 0 offen offset:16")
    A.label("L_end")
    A("s_endpgm")
    if fused:
        A.label("L_mknonce")
        A(f"s_mul_i32 s86, s{sH}, 0x9E3779B9")
        A(f"s_mul_i32 s87, s{sH+1}, 0x7F4A7C15")
        A(f"s_add_u32 s86, s86, s87")
        A(f"s_mul_hi_u32 s87, s{sH}, 0x7F4A7C15")
        A(f"s_add_u32 s86, s86, s87")
        A(f"s_mul_i32 s{sH}, s{sH}, 0x7F4A7C15")
        A(f"s_or_b32 s{sH+1}, s86, 0x80000000")
        A(f"v_mov_b32 v92, s{sH}")
        A(f"v_mov_b32 v93, s{sH+1}")
        A(f"v_mov_b32 v94, 0")
        A(f"v_mul_u32_u24 v95, {CNT_STRIDE}, v{vLANE}")
        A(f"v_add_u32 v95, {CNT_BASE}, v95")
        A(f"s_mov_b64 exec, 15")
        A(f"global_store_dword v95, v94, s[22:23] sc0 sc1")
        A(f"s_waitcnt vmcnt(0)")
        A(f"s_mov_b64 exec, 1")
        A(f"global_store_dwordx2 v94, v[92:93], s[20:21] offset:192 sc0 sc1")
        A(f"s_mov_b64 exec, -1")
        A(f"s_branch L_nonced")
    A.label("L_again")
    for k in range(3):
        A(f"s_load_dword s{sBT+k}, s[{sBTA}:{sBTA+1}], {(5+k)*1024}")
    A("s_waitcnt vmcnt(0) lgkmcnt(0)")
    A.nop(8)
    A("s_branch L_round")
    A.label("L_rescale")
    A(f"v_sub_f32 v15, v{vMRUN}, v{vMC}")
    A(f"v_exp_f32 v15, v15")
    A.nop(1)
    for i in range(36):
        A(f"v_mul_f32 v{vO+i}, v{vO+i}, v15")
    A("s_branch L_rescaled")


def combine_kernel(A, name):
    A.L.append(f".globl {name}")
    A.L.append(".p2align 8")
    A.L.append(f".type {name},@function")
    A.label(name)
    A("s_load_dwordx2 s[18:19], s[0:1], 40")
    A("s_load_dwordx2 s[22:23], s[0:1], 56")
    A("s_cmp_ge_u32 s2, 256")
    A("s_cbranch_scc1 L2_end")
    A("v_lshrrev_b32 v1, 6, v0")
    A(f"v_and_b32 v{vLANE}, 63, v0")
    A(f"v_readfirstlane_b32 s{sW}, v1")
    A(f"s_and_b32 s{sPR}, s2, 1")
    A(f"s_bfe_u32 s{sB}, s2, 0x10001")
    A(f"s_lshr_b32 s{sSI}, s2, 2")
    consumer_addr(A)
    A("s_waitcnt lgkmcnt(0)")
    srd(A, sWS, 22, WS_BYTES)
    srd(A, sOUT, 18, 16384)
    consumer(A, False, "L2")
    A.label("L2_end")
    A("s_endpgm")


def kd(name, vgpr, sgpr=102):
    return f""".amdhsa_kernel {name}
  .amdhsa_next_free_vgpr {vgpr}
  .amdhsa_next_free_sgpr {sgpr}
  .amdhsa_accum_offset {vgpr}
  .amdhsa_group_segment_fixed_size 0
  .amdhsa_kernarg_size 64
  .amdhsa_user_sgpr_count 2
  .amdhsa_user_sgpr_kernarg_segment_ptr 1
  .amdhsa_system_sgpr_workgroup_id_x 1
.end_amdhsa_kernel
"""


def gen(fused=True, SS=8192, LS=128, **kw):
    LAY.update(SS=SS, LS=LS)
    A = G()
    k1 = NAME + "_kernel"
    k2 = "combine_kernel"
    lds = 32768 + 1024
    out = HEADER
    if fused:
        out += f"; @launch grid=(256,1,1) block=(512,1,1) lds={lds}\n"
    else:
        out += f"; @launch kernel={k1} grid=(256,1,1) block=(512,1,1) lds={lds}\n"
        out += f"; @launch kernel={k2} grid=(256,1,1) block=(128,1,1) lds=0\n"
    out += '.amdgcn_target "amdgcn-amd-amdhsa--gfx950"\n.text\n'
    main_kernel(A, k1, fused, **kw)
    if not fused:
        combine_kernel(A, k2)
    out += "\n".join(A.L) + "\n"
    out += f".fill (8192 - (. - {k1})) / 4, 4, 0xbf810000\n"
    out += '.section .rodata,"a"\n.p2align 6\n' + kd(k1, 256)
    if not fused:
        out += ".p2align 6\n" + kd(k2, 128)
    return out


if __name__ == "__main__":
    kw = eval("dict(" + (sys.argv[2] if len(sys.argv) > 2 else "") + ")")
    open(sys.argv[1], "w").write(gen(**kw))
```

```python
import sys, struct

NAME = "standalone__paged_block_table_kv_pagedattention__decode"
KV_BYTES = 4100 * 16384
WS_BYTES = 268697600
GS = 512 << 10
LSE_BASE = 2 << 20
CNT_BASE = (2 << 20) + (128 << 10)
CNT_STRIDE = 4096 + 256
FLAG_OFF = 2048
STAMP_BASE = 4 << 20
NEG = 0xF149F2CA
SCALE = struct.unpack("<I", struct.pack("<f", 1.4426950408889634 / (128 ** 0.5)))[0]
HEADER = open("cdna_kernels/" + NAME + ".s.ref").read().split("; Override launch geometry")[0]
LDS_N = 0
LDS_M = 64
LDS_L = LDS_M + 512
LDS_X = 2048
LDS_XE = LDS_X + 32768
LDS_TOTAL = LDS_X + 65536


class G:
    def __init__(self):
        self.L = []
    def __call__(self, s):
        self.L.append("  " + s)
    def label(self, s):
        self.L.append(s + ":")
    def c(self, s):
        self.L.append("  ; " + s)
    def nop(self, n):
        while n > 0:
            k = min(n, 16)
            self(f"s_nop {k-1}")
            n -= k


def srd(A, d, lo, nbytes):
    A(f"s_mov_b32 s{d}, s{lo}")
    A(f"s_mov_b32 s{d+1}, s{lo+1}")
    A(f"s_mov_b32 s{d+2}, {nbytes}")
    A(f"s_mov_b32 s{d+3}, 0x20000")


DPPM = "row_mask:0xf bank_mask:0xf"
vLANE, vR, vG = 2, 3, 4
vKOFF, vVOFF, vADDR = 6, 7, 8
vT0, vT1, vNEG, vMRUN, vMC = 9, 10, 11, 12, 13
vQ = 16
vC = 24
vPA, vPB, vPC = 40, 44, 48
vONE = 52
vO = 56
vL = 88
vK = 96
vV = 176
sW, sPR, sB, sSI, sWI = 3, 4, 5, 6, 7
sK, sV, sWS, sQ, sOUT, sDBG = 24, 28, 32, 36, 40, 44
sBT = 48
sLL = 53
sBTA = 54
sEFF, s8K, sSC, sSELLO, sSELHI = 56, 57, 58, 59, 60
sPB = 61
sOFF, sNV = 66, 71
sMORE = 76
sKVH = 77
sH = 84
sST = 90
cA, cB, cOUT, cFL, cLS, cG, cACC = 96, 97, 98, 99, 100, 104, 120


def tags(A):
    A(f"s_and_b32 s86, s{sH}, 0xfff")
    A(f"s_bfe_u32 s87, s{sH}, 0xc000c")
    A(f"s_lshr_b64 s[88:89], s[{sH}:{sH+1}], 24")
    A(f"s_bfe_u32 s89, s88, 0xc000c")
    A(f"s_and_b32 s88, s88, 0xfff")


def consumer_addr(A):
    A.c("final-combine addresses: line si of the group, half = wave")
    A(f"s_lshl_b32 s62, s{sB}, 1")
    A(f"s_add_u32 s62, s62, s{sPR}")
    A(f"s_mul_i32 s63, s62, {CNT_STRIDE}")
    A(f"s_add_u32 s63, s63, {CNT_BASE}")
    A(f"v_mov_b32 v{cFL}, s63")
    A(f"s_mul_i32 s63, s62, {GS}")
    A(f"s_lshl_b32 s64, s{sSI}, 7")
    A(f"s_add_u32 s63, s63, s64")
    A(f"s_lshl_b32 s64, s{sW}, 6")
    A(f"s_add_u32 s63, s63, s64")
    A(f"v_lshrrev_b32 v124, 2, v{vLANE}")
    A(f"v_and_b32 v125, 3, v{vLANE}")
    A(f"v_lshlrev_b32 v{cA}, 13, v124")
    A(f"v_lshl_add_u32 v{cA}, v125, 4, v{cA}")
    A(f"v_add_u32 v{cA}, s63, v{cA}")
    A(f"s_lshr_b32 s64, s{sSI}, 5")
    A(f"s_and_b32 s65, s{sSI}, 7")
    A(f"s_lshl_b32 s66, s62, 4")
    A(f"s_lshl_b32 s67, s64, 3")
    A(f"s_add_u32 s66, s66, s67")
    A(f"s_add_u32 s66, s66, s65")
    A(f"s_lshl_b32 s66, s66, 10")
    A(f"s_add_u32 s66, s66, {LSE_BASE}")
    A(f"v_lshl_add_u32 v{cB}, v125, 4, v124")
    A(f"v_lshlrev_b32 v{cB}, 4, v{cB}")
    A(f"v_add_u32 v{cB}, s66, v{cB}")
    A(f"s_mov_b32 s8, 0x20000")
    A(f"s_mov_b32 s9, 0x40000")
    A(f"s_mov_b32 s10, 0x60000")
    A(f"s_lshl_b32 s67, s{sPR}, 1")
    A(f"s_add_u32 s67, s67, s64")
    A(f"s_lshl_b32 s67, s67, 3")
    A(f"s_add_u32 s67, s67, s65")
    A(f"s_lshl_b32 s66, s{sB}, 5")
    A(f"s_add_u32 s67, s67, s66")
    A(f"s_lshl_b32 s67, s67, 7")
    A(f"s_bfe_u32 s66, s{sSI}, 0x20003")
    A(f"s_lshl_b32 s66, s66, 5")
    A(f"s_add_u32 s67, s67, s66")
    A(f"s_lshl_b32 s66, s{sW}, 2")
    A(f"s_xor_b32 s66, s66, s65")
    A(f"v_xor_b32 v{cOUT}, s66, v125")
    A(f"v_lshrrev_b32 v124, 4, v{vLANE}")
    A(f"v_lshl_add_u32 v{cOUT}, v124, 3, v{cOUT}")
    A(f"v_add_u32 v{cOUT}, s67, v{cOUT}")
    A(f"v_lshlrev_b32 v{cOUT}, 1, v{cOUT}")


def consumer(A, lab, stamps, sleep, lpol):
    so = ["0", "s8", "s9", "s10"]
    t0, t1, t2, t3 = 124, 125, 126, 127
    pL = 62; pG = [64, 66, 68, 70]
    def P(x): return f"s[{x}:{x+1}]"
    def ld_l():
        A(f"buffer_load_dwordx4 v[{cLS}:{cLS+3}], v{cB}, s[{sWS}:{sWS+3}], 0 offen {lpol}")
    def ld_g(j):
        r = cG + 4*j
        A(f"buffer_load_dwordx4 v[{r}:{r+3}], v{cA}, s[{sWS}:{sWS+3}], {so[j]} offen {lpol}")
    def chk_l():
        A(f"v_xor_b32 v{t0}, s{sH}, v{cLS+1}")
        A(f"v_xor_b32 v{t1}, s{sH+1}, v{cLS+3}")
        A(f"v_or_b32 v{t0}, v{t0}, v{t1}")
        A(f"v_cmp_ne_u32_e64 {P(pL)}, 0, v{t0}")
    def chk_g(j):
        r = cG + 4*j
        for q in range(4):
            A(f"v_xor_b32 v{r+q}, s{86+q}, v{r+q}")
        A(f"v_or3_b32 v{t1}, v{r}, v{r+1}, v{r+2}")
        A(f"v_or_b32 v{t1}, v{t1}, v{r+3}")
        A(f"v_and_b32 v{t1}, 0xfff, v{t1}")
        A(f"v_cmp_ne_u32_e64 {P(pG[j])}, 0, v{t1}")
    A(f"s_mov_b32 s72, 0x100000")
    A.c("wait for the group's go flag (a hint only: the tags decide)")
    A(f"s_mov_b64 exec, 1")
    A.label(f"{lab}_flag")
    A(f"buffer_load_dword v{t0}, v{cFL}, s[{sWS}:{sWS+3}], 0 offen offset:{FLAG_OFF} sc1")
    A(f"s_sub_u32 s72, s72, 1")
    A(f"s_cbranch_scc1 {lab}_end")
    A("s_waitcnt vmcnt(0)")
    A(f"v_cmp_eq_u32 vcc, s{sH+1}, v{t0}")
    A(f"s_cbranch_vccnz {lab}_go")
    if sleep: A(f"s_sleep {sleep}")
    A(f"s_branch {lab}_flag")
    A.label(f"{lab}_go")
    if stamps:
        A(f"s_memrealtime s[{sST+4}:{sST+5}]")
        A(f"s_mov_b32 s72, 0x100000")
    A(f"s_mov_b64 exec, -1")
    ld_l()
    for j in range(4): ld_g(j)
    A("s_waitcnt vmcnt(4)")
    chk_l()
    for j in range(4):
        A(f"s_waitcnt vmcnt({3-j})")
        chk_g(j)
    A.label(f"{lab}_test")
    A(f"s_or_b64 s[74:75], {P(pL)}, {P(pG[0])}")
    A(f"s_or_b64 s[80:81], {P(pG[1])}, {P(pG[2])}")
    A(f"s_or_b64 s[74:75], s[74:75], {P(pG[3])}")
    A(f"s_or_b64 s[74:75], s[74:75], s[80:81]")
    A(f"s_cbranch_scc1 {lab}_retry")
    A(f"s_mov_b64 exec, -1")
    if stamps:
        A(f"s_memrealtime s[{sST+8}:{sST+9}]")
    M = cLS
    A(f"v_max_f32_dpp v{t0}, v{M}, v{M} quad_perm:[1,0,3,2] {DPPM}")
    A.nop(2)
    A(f"v_max_f32_dpp v{t0}, v{t0}, v{t0} quad_perm:[2,3,0,1] {DPPM}")
    A.nop(2)
    A(f"v_max_f32_dpp v{t0}, v{t0}, v{t0} row_ror:4 {DPPM}")
    A.nop(2)
    A(f"v_max_f32_dpp v{t0}, v{t0}, v{t0} row_ror:8 {DPPM}")
    A(f"v_mov_b32 v{t1}, v{t0}")
    A.nop(2)
    A(f"v_permlane16_swap_b32 v{t0}, v{t1}")
    A(f"v_max_f32 v{t0}, v{t0}, v{t1}")
    A(f"v_mov_b32 v{t1}, v{t0}")
    A.nop(2)
    A(f"v_permlane32_swap_b32 v{t0}, v{t1}")
    A(f"v_max_f32 v{t0}, v{t0}, v{t1}")
    A(f"v_sub_f32 v{t0}, v{M}, v{t0}")
    A(f"v_exp_f32 v{t0}, v{t0}")
    A.nop(1)
    A(f"v_mul_f32 v{t3}, v{t0}, v{M+2}")
    acc = cACC
    def wsum(j):
        op = "v_mul_f32_dpp" if j == 0 else "v_fmac_f32_dpp"
        for q in range(4):
            A(f"{op} v{acc+q}, v{t0}, v{cG+4*j+q} quad_perm:[{j},{j},{j},{j}] {DPPM}")
    wsum(0)
    A(f"v_add_f32_dpp v{t1}, v{t3}, v{t3} quad_perm:[1,0,3,2] {DPPM}")
    wsum(1)
    A(f"v_add_f32_dpp v{t1}, v{t1}, v{t1} quad_perm:[2,3,0,1] {DPPM}")
    wsum(2)
    A(f"v_add_f32_dpp v{t1}, v{t1}, v{t1} row_ror:4 {DPPM}")
    wsum(3)
    A(f"v_add_f32_dpp v{t1}, v{t1}, v{t1} row_ror:8 {DPPM}")
    A(f"v_permlane16_swap_b32 v{acc}, v{acc+1}")
    A(f"v_mov_b32 v{t2}, v{t1}")
    A(f"v_permlane16_swap_b32 v{acc+2}, v{acc+3}")
    A(f"v_add_f32 v{acc}, v{acc}, v{acc+1}")
    A(f"v_permlane16_swap_b32 v{t1}, v{t2}")
    A(f"v_add_f32 v{acc+2}, v{acc+2}, v{acc+3}")
    A(f"v_add_f32 v{t1}, v{t1}, v{t2}")
    A(f"v_mov_b32 v{t2}, v{t1}")
    A(f"v_permlane32_swap_b32 v{acc}, v{acc+2}")
    A.nop(1)
    A(f"v_permlane32_swap_b32 v{t1}, v{t2}")
    A(f"v_add_f32 v{acc}, v{acc}, v{acc+2}")
    A(f"v_add_f32 v{t1}, v{t1}, v{t2}")
    A(f"v_rcp_f32 v{t1}, v{t1}")
    A(f"v_add_f32_dpp v{acc}, v{acc}, v{acc} row_ror:4 {DPPM}")
    A(f"s_mov_b32 s62, 0x000f000f")
    A(f"s_mov_b32 s63, 0x000f000f")
    A(f"v_add_f32_dpp v{acc}, v{acc}, v{acc} row_ror:8 {DPPM}")
    A(f"v_mul_f32 v{acc}, v{acc}, v{t1}")
    A(f"v_cvt_pk_bf16_f32 v{acc}, v{acc}, v{acc}")
    A(f"s_mov_b64 exec, s[62:63]")
    A(f"buffer_store_short v{acc}, v{cOUT}, s[{sOUT}:{sOUT+3}], 0 offen")
    A(f"s_branch {lab}_end")
    A.label(f"{lab}_retry")
    A(f"s_sub_u32 s72, s72, 1")
    A(f"s_cbranch_scc1 {lab}_end")
    A(f"s_mov_b64 exec, {P(pL)}")
    A(f"s_cbranch_execz {lab}_s0")
    ld_l()
    for j in range(4):
        A.label(f"{lab}_s{j}")
        A(f"s_mov_b64 exec, {P(pG[j])}")
        A(f"s_cbranch_execz {lab}_s{j+1}")
        ld_g(j)
    A.label(f"{lab}_s4")
    A("s_waitcnt vmcnt(0)")
    A(f"s_mov_b64 exec, {P(pL)}")
    chk_l()
    for j in range(4):
        A(f"s_mov_b64 exec, {P(pG[j])}")
        chk_g(j)
    A(f"s_branch {lab}_test")


def main_kernel(A, name, pol="nt", stamps=False, sleep=2, spol="sc0 sc1", lpol="sc1", b1pos=3, v4pos=(0, 1, 2, 3), dbg=0, half=0):
    A.L.append(f".globl {name}")
    A.L.append(".p2align 8")
    A.L.append(f".type {name},@function")
    A.label(name)
    A("s_load_dwordx16 s[8:23], s[0:1], 0")
    A("s_cmp_ge_u32 s2, 256")
    A("s_cbranch_scc1 L_end")
    A.c("pull this kernel's code into L2 (one 1 KiB piece per wave)")
    A("s_getpc_b64 s[62:63]")
    A.label("L_pc")
    A("v_lshlrev_b32 v1, 4, v0")
    A(f"s_sub_u32 s62, s62, L_pc-{name}")
    A(f"s_subb_u32 s63, s63, 0")
    A(f"global_load_dwordx4 v[{vC}:{vC+3}], v1, s[62:63]")
    if stamps:
        A(f"s_memrealtime s[{sST}:{sST+1}]")
    A(f"s_memrealtime s[{sH}:{sH+1}]")
    A("v_lshrrev_b32 v1, 6, v0")
    A(f"v_and_b32 v{vLANE}, 63, v0")
    A(f"v_readfirstlane_b32 s{sW}, v1")
    A(f"v_and_b32 v{vR}, 15, v0")
    A(f"v_lshrrev_b32 v{vG}, 4, v{vLANE}")
    A(f"s_and_b32 s{sPR}, s2, 1")
    A(f"s_bfe_u32 s{sB}, s2, 0x10001")
    A(f"s_lshr_b32 s{sSI}, s2, 2")
    A(f"s_lshr_b32 s{sWI}, s{sW}, 1")
    A(f"s_lshl_b32 s{sWI}, s{sWI}, 6")
    A(f"s_add_u32 s{sWI}, s{sWI}, s{sSI}")
    A(f"s_lshl_b32 s62, s{sB}, 11")
    A(f"s_add_u32 s62, s62, s{sWI}")
    A(f"s_lshl_b32 s64, s62, 2")
    A(f"s_lshl_b32 s65, s{sB}, 2")
    A("s_waitcnt lgkmcnt(0)")
    A(f"s_add_u32 s{sBTA}, s14, s64")
    A(f"s_addc_u32 s{sBTA+1}, s15, 0")
    A(f"s_load_dword s{sEFF}, s[16:17], s65")
    for k in (4, 0, 1, 2, 3):
        A(f"s_load_dword s{sBT+k}, s[{sBTA}:{sBTA+1}], {k*1024}")
    A(f"s_or_b32 s62, s2, s{sW}")
    A(f"s_cbranch_scc0 L_mknonce")
    A.label("L_nonced")
    A(f"s_and_b32 s{sKVH}, s{sW}, 1")
    A(f"s_lshl_b32 s62, s{sPR}, 1")
    A(f"s_add_u32 s{sKVH}, s{sKVH}, s62")
    A(f"v_lshrrev_b32 v5, 1, v{vR}")
    A(f"v_lshlrev_b32 v{vKOFF}, 10, v5")
    A(f"v_lshl_add_u32 v{vKOFF}, v{vG}, 5, v{vKOFF}")
    A(f"v_and_b32 v5, 1, v{vR}")
    A(f"v_lshl_add_u32 v{vKOFF}, v5, 4, v{vKOFF}")
    A(f"s_lshl_b32 s66, s{sKVH}, 8")
    A(f"v_add_u32 v{vKOFF}, s66, v{vKOFF}")
    A(f"v_lshlrev_b32 v{vVOFF}, 11, v{vG}")
    A(f"v_lshl_add_u32 v{vVOFF}, v{vR}, 4, v{vVOFF}")
    A(f"v_add_u32 v{vVOFF}, s66, v{vVOFF}")
    A(f"v_and_b32 v5, 7, v{vR}")
    A(f"v_lshlrev_b32 v14, 8, v5")
    A(f"v_lshl_add_u32 v14, v{vG}, 5, v14")
    A(f"v_lshrrev_b32 v5, 3, v{vR}")
    A(f"v_lshl_add_u32 v14, v5, 4, v14")
    A(f"s_lshl_b32 s67, s{sB}, 13")
    A(f"s_lshl_b32 s68, s{sKVH}, 11")
    A(f"s_add_u32 s67, s67, s68")
    srd(A, sK, 10, KV_BYTES)
    srd(A, sQ, 8, 16384)
    A(f"s_movk_i32 s{s8K}, 0x2000")
    A(f"s_mov_b32 s{sPB}, s{sWI}")
    A("s_waitcnt lgkmcnt(0)")
    if stamps:
        A(f"s_memrealtime s[{sST+2}:{sST+3}]")
    A.c("eff = cl<=0 ? 32768 : min(cl, 32768);  cl<=0: Q reads as zero (uniform softmax over all keys)")
    A(f"s_cmp_le_i32 s{sEFF}, 0")
    A(f"s_cselect_b32 s67, 0x80000000, s67")
    A(f"s_cselect_b32 s{sEFF}, 0x8000, s{sEFF}")
    A(f"s_min_i32 s{sEFF}, s{sEFF}, 0x8000")
    A(f"v_add_u32 v14, s67, v14")
    A(f"buffer_load_dwordx4 v[{vQ}:{vQ+3}], v14, s[{sQ}:{sQ+3}], 0 offen")
    A(f"buffer_load_dwordx4 v[{vQ+4}:{vQ+7}], v14, s[{sQ}:{sQ+3}], 0 offen offset:128")
    A.label("L_round")
    ks = [4, 0, 1, 2, 3]
    A(f"s_lshl_b32 s62, s{sPB}, 4")
    A(f"s_sub_i32 s62, s{sEFF}, s62")

    def slot_setup(s):
        k = ks[s]
        A(f"s_sub_i32 s{sNV+s}, s62, {k*4096}")
        A(f"s_lshl_b32 s{sOFF+s}, s{sBT+k}, 14")
        A(f"s_cmp_gt_i32 s{sNV+s}, 0")
        A(f"s_cselect_b32 s{sOFF+s}, s{sOFF+s}, 0x80000000")

    def kload(s):
        A(f"v_add_u32 v{vADDR}, s{sOFF+s}, v{vKOFF}")
        for n, (so, o) in enumerate([("0", 0), ("0", 128), (f"s{s8K}", 0), (f"s{s8K}", 128)]):
            r = vK + 16*s + 4*n
            A(f"buffer_load_dwordx4 v[{r}:{r+3}], v{vADDR}, s[{sK}:{sK+3}], {so} offen offset:{o} {pol}")

    def vload(s):
        A(f"v_add_u32 v{vADDR}, s{sOFF+s}, v{vVOFF}")
        for n, (so, o) in enumerate([("0", 0), ("0", 1024), (f"s{s8K}", 0), (f"s{s8K}", 1024)]):
            r = vV + 16*s + 4*n
            A(f"buffer_load_dwordx4 v[{r}:{r+3}], v{vADDR}, s[{sV}:{sV+3}], {so} offen offset:{o} {pol}")

    def qk_mfma(s):
        c = vC + 8*(s & 1)
        k = vK + 16*s
        A(f"v_mfma_f32_16x16x32_bf16 v[{c}:{c+3}], v[{k}:{k+3}], v[{vQ}:{vQ+3}], 0")
        A(f"v_mfma_f32_16x16x32_bf16 v[{c+4}:{c+7}], v[{k+8}:{k+11}], v[{vQ}:{vQ+3}], 0")
        A(f"v_mfma_f32_16x16x32_bf16 v[{c}:{c+3}], v[{k+4}:{k+7}], v[{vQ+4}:{vQ+7}], v[{c}:{c+3}]")
        A(f"v_mfma_f32_16x16x32_bf16 v[{c+4}:{c+7}], v[{k+12}:{k+15}], v[{vQ+4}:{vQ+7}], v[{c+4}:{c+7}]")

    def qk_post(s):
        c = vC + 8*(s & 1)
        x = vK + 16*s
        A(f"s_sub_i32 s63, s{sNV+s}, 8")
        A(f"v_cmp_gt_i32_e64 s[80:81], s{sNV+s}, v{vT0}")
        A(f"v_cmp_gt_i32_e64 s[82:83], s{sNV+s}, v{vT1}")
        A(f"v_add_f32_dpp v{x}, v{c+1}, v{c} row_ror:8 {DPPM}")
        A(f"v_add_f32_dpp v{x+1}, v{c+3}, v{c+2} row_ror:8 {DPPM}")
        A(f"v_add_f32_dpp v{x+2}, v{c+5}, v{c+4} row_ror:8 {DPPM}")
        A(f"v_add_f32_dpp v{x+3}, v{c+7}, v{c+6} row_ror:8 {DPPM}")
        A(f"v_cndmask_b32_e64 v{x}, v{vNEG}, v{x}, s[80:81]")
        A(f"v_cndmask_b32_e64 v{x+1}, v{vNEG}, v{x+1}, s[82:83]")
        A(f"v_cmp_gt_i32_e64 s[80:81], s63, v{vT0}")
        A(f"v_cmp_gt_i32_e64 s[82:83], s63, v{vT1}")
        A.nop(1)
        A(f"v_cndmask_b32_e64 v{x+2}, v{vNEG}, v{x+2}, s[80:81]")
        A(f"v_cndmask_b32_e64 v{x+3}, v{vNEG}, v{x+3}, s[82:83]")
        if s == 0:
            A(f"v_max3_f32 v14, v{x}, v{x+1}, v{x+2}")
            A(f"v_max_f32 v14, v14, v{x+3}")
        else:
            A(f"v_max3_f32 v14, v14, v{x}, v{x+1}")
            A(f"v_max3_f32 v14, v14, v{x+2}, v{x+3}")

    issued = [0]
    def W(idx):
        A(f"s_waitcnt vmcnt({issued[0] - 1 - idx})")
    def KL(s):
        kload(s); issued[0] += 4
    def VL(s):
        vload(s); issued[0] += 4

    for s in range(5):
        slot_setup(s)
        KL(s)
    A.c("round flags: MORE = another round follows; LL = late wave in its last round")
    A(f"s_cmp_gt_i32 s62, {5*4096}")
    A(f"s_cselect_b32 s{sMORE}, 1, 0")
    A(f"s_cselect_b32 s63, 0, s{sW}")
    A(f"s_cmp_ge_u32 s63, 4")
    A(f"s_cselect_b32 s{sLL}, 1, 0")
    srd(A, sV, 12, KV_BYTES)
    srd(A, sWS, 22, WS_BYTES)
    srd(A, sOUT, 18, 16384)
    srd(A, sDBG, 20, 256)
    A(f"s_mov_b32 s{sSC}, {SCALE:#x}")
    A(f"s_mov_b32 s{sSELLO}, 0x05040100")
    A(f"s_mov_b32 s{sSELHI}, 0x07060302")
    A(f"v_lshlrev_b32 v{vT0}, 1, v{vG}")
    A(f"v_or_b32 v{vT1}, 1, v{vT0}")
    A(f"v_mov_b32 v{vNEG}, {NEG:#x}")
    A(f"v_mov_b32 v{vONE}, 0x3f803f80")
    for i in range(1, 4):
        A(f"v_mov_b32 v{vONE+i}, v{vONE}")
    A(f"s_and_b32 s64, s{sW}, 1")
    A(f"s_lshl_b32 s64, s64, 8")
    A(f"v_lshlrev_b32 v42, 4, v{vR}")
    A(f"v_add_u32 v42, s64, v42")
    A(f"s_lshr_b32 s64, s{sW}, 1")
    A(f"s_lshl_b32 s64, s64, 2")
    A(f"v_add_u32 v43, s64, v42")
    A(f"v_mov_b32 v5, 0")
    A(f"s_cmp_lg_u32 s{sPB}, s{sWI}")
    A(f"s_cbranch_scc1 L_noinit")
    A(f"v_mov_b32 v{vMRUN}, v{vNEG}")
    for i in range(36):
        A(f"v_mov_b32 v{vO+i}, 0")
    A.label("L_noinit")
    W(3); qk_mfma(0)
    VL(0)
    W(7); qk_mfma(1); qk_post(0)
    W(11); qk_mfma(2); qk_post(1)
    VL(1)
    W(15); qk_mfma(3); qk_post(2)
    VL(2)
    W(19); qk_mfma(4); qk_post(3)
    VL(3)
    qk_post(4)
    if v4pos is None:
        VL(4)
        v4pos = (9, 9, 9, 9)
    A(f"v_mov_b32 v15, v14")
    A.nop(2)
    A(f"v_permlane16_swap_b32 v14, v15")
    A(f"v_max_f32 v14, v14, v15")
    A(f"v_mov_b32 v15, v14")
    A.nop(2)
    A(f"v_permlane32_swap_b32 v14, v15")
    A(f"v_max_f32 v14, v14, v15")
    A(f"v_mul_f32 v14, s{sSC}, v14")
    A(f"v_max_f32 v{vMC}, v14, v{vMRUN}")
    EM = vK + 4
    A(f"s_cmp_eq_u32 s{sLL}, 0")
    A(f"s_cbranch_scc1 L_ownmax")
    A.c("late wave, last round: common max of the head's four waves")
    A(f"ds_write_b32 v43, v{vMC} offset:{LDS_M}")
    A("s_waitcnt lgkmcnt(0)")
    A("s_barrier")
    A(f"ds_read_b128 v[{EM}:{EM+3}], v42 offset:{LDS_M}")
    A(f"ds_read_b64 v[92:93], v5 offset:{LDS_N}")
    A("s_waitcnt lgkmcnt(1)")
    A(f"v_max3_f32 v{vMC}, v{EM}, v{EM+1}, v{EM+2}")
    A(f"v_max_f32 v{vMC}, v{vMC}, v{EM+3}")
    A("s_waitcnt lgkmcnt(0)")
    A(f"v_readfirstlane_b32 s{sH}, v92")
    A(f"v_readfirstlane_b32 s{sH+1}, v93")
    A.label("L_ownmax")
    A(f"s_cmp_lg_u32 s{sPB}, s{sWI}")
    A(f"s_cbranch_scc1 L_rescale")
    A.label("L_rescaled")
    A(f"v_mov_b32 v{vMRUN}, v{vMC}")
    A(f"v_add_u32 v{vADDR}, s{sOFF+4}, v{vVOFF}")
    v4 = [("0", 0), ("0", 1024), (f"s{s8K}", 0), (f"s{s8K}", 1024)]
    pdst = {0: vPA, 1: vPB, 2: vPB+2, 3: vPC, 4: vPC+2}
    for s in range(5):
        x = vK + 16*s
        for n in range(4):
            if v4pos[n] == s:
                r = vV + 64 + 4*n
                A(f"buffer_load_dwordx4 v[{r}:{r+3}], v{vADDR}, s[{sV}:{sV+3}], {v4[n][0]} offen offset:{v4[n][1]} {pol}")
                issued[0] += 1
        for q in range(4):
            A(f"v_fma_f32 v{x+q}, v{x+q}, s{sSC}, -v{vMC}")
        for q in range(4):
            A(f"v_exp_f32 v{x+q}, v{x+q}")
        if s > 0:
            xp = vK + 16*(s-1)
            A(f"v_cvt_pk_bf16_f32 v{pdst[s-1]}, v{xp}, v{xp+1}")
            A(f"v_cvt_pk_bf16_f32 v{pdst[s-1]+1}, v{xp+2}, v{xp+3}")
    A(f"v_mfma_f32_16x16x16_bf16 v[{vL}:{vL+3}], v[{vONE}:{vONE+1}], v[{vPA}:{vPA+1}], v[{vL}:{vL+3}]")
    xp = vK + 64
    A(f"v_cvt_pk_bf16_f32 v{pdst[4]}, v{xp}, v{xp+1}")
    A(f"v_cvt_pk_bf16_f32 v{pdst[4]+1}, v{xp+2}, v{xp+3}")
    A(f"v_lshlrev_b32 v14, 7, v{vLANE}")
    A(f"v_and_b32 v15, 7, v{vLANE}")
    A(f"v_lshl_add_u32 v14, v15, 4, v14")
    A(f"s_xor_b32 s62, s{sW}, 4")
    A(f"s_lshl_b32 s62, s62, 13")
    A(f"v_add_u32 v14, s62, v14")
    for i in range(8):
        A(f"v_xor_b32 v{vC+i}, {16*i}, v14")
    A(f"v_mfma_f32_16x16x32_bf16 v[{vL}:{vL+3}], v[{vONE}:{vONE+3}], v[{vPB}:{vPB+3}], v[{vL}:{vL+3}]")
    A(f"v_mfma_f32_16x16x32_bf16 v[{vL}:{vL+3}], v[{vONE}:{vONE+3}], v[{vPC}:{vPC+3}], v[{vL}:{vL+3}]")

    def addr_block():
        A(f"s_and_b32 s62, s{sW}, 1")
        A(f"s_lshl_b32 s63, s62, 13")
        A(f"s_bfe_u32 s64, s{sW}, 0x10001")
        A(f"s_lshl_b32 s65, s64, 12")
        A(f"s_add_u32 s63, s63, s65")
        A(f"v_lshlrev_b32 v33, 4, v{vLANE}")
        A(f"v_add_u32 v38, s63, v33")
        A(f"s_lshl_b32 s65, s64, 14")
        A(f"v_add_u32 v37, s65, v38")
        A(f"s_xor_b32 s65, s65, 0x4000")
        A(f"v_add_u32 v32, s65, v38")
        A(f"s_lshl_b32 s65, s{sB}, 1")
        A(f"s_add_u32 s65, s65, s{sPR}")
        A(f"s_mul_i32 s63, s65, {GS}")
        A(f"s_lshl_b32 s66, s{sSI}, 13")
        A(f"s_add_u32 s63, s63, s66")
        A(f"s_lshl_b32 s66, s62, 12")
        A(f"s_add_u32 s63, s63, s66")
        A(f"s_lshl_b32 s66, s64, 11")
        A(f"s_add_u32 s63, s63, s66")
        A(f"v_add_u32 v34, s63, v33")
        A(f"s_lshl_b32 s63, s65, 14")
        A(f"s_lshl_b32 s66, s62, 13")
        A(f"s_add_u32 s63, s63, s66")
        A(f"s_lshl_b32 s66, s{sSI}, 4")
        A(f"s_add_u32 s63, s63, s66")
        A(f"s_add_u32 s63, s63, {LSE_BASE}")
        A(f"v_lshlrev_b32 v35, 10, v{vLANE}")
        A(f"v_add_u32 v35, s63, v35")
        A(f"s_and_b32 s62, s{sW}, 3")
        A(f"s_lshl_b32 s62, s62, 2")
        A(f"v_mov_b32 v36, s62")
        A(f"v_xor_b32 v15, 8, v36")
        tags(A)
        A(f"s_movk_i32 s80, 0xf000")

    def perms(s, dst, stride, sub, irange=range(8)):
        v = vV + 16*s
        for i in irange:
            sel = sSELLO if (i & 1) == 0 else sSELHI
            for u in range(2):
                r0 = v + 8*u + (i >> 1)
                r1 = v + 8*u + 4 + (i >> 1)
                A(f"v_perm_b32 v{dst + stride*i + sub + u}, v{r1}, v{r0}, s{sel}")

    ES = vV
    def B1(pos):
        if pos == b1pos:
            A(f"s_cmp_eq_u32 s{sLL}, 0")
            A(f"s_cbranch_scc1 L_nob1")
            A("s_waitcnt lgkmcnt(0)")
            A(f"s_barrier")
            A(f"ds_read_b128 v[92:95], v42 offset:{LDS_L}")
            A(f"ds_read_b128 v[{ES}:{ES+3}], v38 offset:{LDS_XE}")
            A(f"ds_read_b128 v[{ES+4}:{ES+7}], v38 offset:{LDS_XE+2048}")
            A(f"ds_read_b128 v[{ES+8}:{ES+11}], v38 offset:{LDS_XE+16384}")
            A(f"ds_read_b128 v[{ES+12}:{ES+15}], v38 offset:{LDS_XE+16384+2048}")
            A.label("L_nob1")

    tA, tB, tC = vK, vK + 16, vK + 48
    W(23)
    perms(0, tA, 2, 0)
    A(f"s_cmp_eq_u32 s{sLL}, 0")
    A(f"s_cbranch_scc1 L_nolw")
    A(f"ds_write_b32 v43, v{vL} offset:{LDS_L}")
    A.label("L_nolw")
    for i in range(8):
        o = vO + 4*i
        A(f"v_mfma_f32_16x16x16_bf16 v[{o}:{o+3}], v[{tA+2*i}:{tA+2*i+1}], v[{vPA}:{vPA+1}], v[{o}:{o+3}]")
    addr_block()
    W(27)
    perms(1, tB, 4, 0)
    W(31)
    B1(2)
    perms(2, tB, 4, 2)
    for i in range(8):
        o = vO + 4*i
        A(f"v_mfma_f32_16x16x32_bf16 v[{o}:{o+3}], v[{tB+4*i}:{tB+4*i+3}], v[{vPB}:{vPB+3}], v[{o}:{o+3}]")
    for q in range(4):
        A(f"v_mov_b32 v{vPB+q}, s{86+q}")
    W(35)
    B1(3)
    perms(3, tC, 4, 0)
    A(f"s_cmp_eq_u32 s{sLL}, 0")
    A(f"s_cbranch_scc1 L_tail_other")
    A.c("---- late wave, last round: last tile with the exchange writes interleaved")
    def presum():
        A("s_waitcnt lgkmcnt(0)")
        for q in range(8):
            A(f"v_add_f32 v{ES+q}, v{ES+q}, v{ES+8+q}")
        A(f"v_add_f32 v92, v92, v93")
        A(f"v_add_f32 v94, v94, v95")
        A(f"v_add_f32 v{vQ+6}, v92, v94")
    A(f"v_mov_b32 v{vQ+4}, v{vMRUN}")
    A(f"v_mov_b32 v{vQ+5}, s{sH}")
    A(f"v_mov_b32 v{vQ+7}, s{sH+1}")
    A(f"v_mov_b32 v14, 1")
    if b1pos < 4: presum()
    W(39)
    if stamps: A(f"s_memrealtime s[{sST+6}:{sST+7}]")
    B1(4)
    def last_tile(with_writes):
        perms(4, tC, 4, 2, range(0, 2))
        for i in range(8):
            if i + 2 < 8:
                perms(4, tC, 4, 2, range(i+2, i+3))
            o = vO + 4*i
            A(f"v_mfma_f32_16x16x32_bf16 v[{o}:{o+3}], v[{tC+4*i}:{tC+4*i+3}], v[{vPC}:{vPC+3}], v[{o}:{o+3}]")
            if with_writes and i >= 3:
                j = i - 3
                A(f"ds_write_b128 v{vC+j}, v[{vO+4*j}:{vO+4*j+3}] offset:{LDS_X}")
    last_tile(True)
    A.nop(3)
    A(f"ds_write_b128 v{vC+5}, v[{vO+20}:{vO+23}] offset:{LDS_X}")
    A.nop(1)
    A(f"ds_write_b128 v{vC+6}, v[{vO+24}:{vO+27}] offset:{LDS_X}")
    A.nop(1)
    A(f"ds_write_b128 v{vC+7}, v[{vO+28}:{vO+31}] offset:{LDS_X}")
    A(f"ds_write_b32 v36, v14 offset:{LDS_N+16}")
    if b1pos == 4: presum()
    R = vK
    A(f"ds_read_b128 v[{R}:{R+3}], v37 offset:{LDS_X}")
    A(f"ds_read_b128 v[{R+4}:{R+7}], v37 offset:{LDS_X+2048}")
    A(f"ds_read_b32 v14, v15 offset:{LDS_N+16}")
    A(f"ds_read_b128 v[{R+8}:{R+11}], v32 offset:{LDS_X}")
    A(f"ds_read_b128 v[{R+12}:{R+15}], v32 offset:{LDS_X+2048}")
    A("s_waitcnt lgkmcnt(3)")
    for q in range(8):
        A(f"v_add_f32 v{R+q}, v{R+q}, v{ES+q}")
    A("s_waitcnt lgkmcnt(2)")
    A(f"v_cmp_eq_u32 vcc, 0, v14")
    A(f"s_cbranch_vccz L_paired")
    A.label("L_pair")
    A(f"ds_read_b32 v14, v15 offset:{LDS_N+16}")
    A(f"ds_read_b128 v[{R+8}:{R+11}], v32 offset:{LDS_X}")
    A(f"ds_read_b128 v[{R+12}:{R+15}], v32 offset:{LDS_X+2048}")
    A("s_waitcnt lgkmcnt(2)")
    A(f"v_cmp_eq_u32 vcc, 0, v14")
    A(f"s_cbranch_vccnz L_pair")
    A.label("L_paired")
    for n in range(2):
        A(f"s_waitcnt lgkmcnt({1-n})")
        for q in range(4):
            A(f"v_add_f32 v{R+4*n+q}, v{R+4*n+q}, v{R+8+4*n+q}")
        for q in range(4):
            A(f"v_and_or_b32 v{R+4*n+q}, v{R+4*n+q}, s80, v{vPB+q}")
        if not (half == 1 and n == 1):
            A(f"buffer_store_dwordx4 v[{R+4*n}:{R+4*n+3}], v34, s[{sWS}:{sWS+3}], 0 offen offset:{1024*n} {spol}")
    if stamps: A(f"s_memrealtime s[{sST+4}:{sST+5}]")
    A(f"s_cmp_ge_u32 s{sW}, 6")
    A(f"s_cbranch_scc1 L_fin")
    A(f"s_mov_b64 exec, 0xff")
    if half != 2:
        A(f"buffer_store_dwordx4 v[{vQ+4}:{vQ+7}], v35, s[{sWS}:{sWS+3}], 0 offen {spol}")
    A(f"s_branch L_fin")
    A.label("L_tail_other")
    W(39)
    if stamps: A(f"s_memrealtime s[{sST+6}:{sST+7}]")
    last_tile(False)
    A(f"s_cmp_lg_u32 s{sMORE}, 0")
    A(f"s_cbranch_scc1 L_again")
    A.c("---- early waves: publish the max, later the state rescaled to the common max")
    A(f"ds_write_b32 v43, v{vMRUN} offset:{LDS_M}")
    A(f"ds_write_b32 v36, v5 offset:{LDS_N+16}")
    A(f"s_cmp_ge_u32 s{sW}, 3")
    A(f"s_cbranch_scc1 L_eA")
    consumer_addr(A)
    A(f"s_cmp_eq_u32 s{sW}, 2")
    A(f"s_cbranch_scc1 L_eA")
    A.c("waves 0,1: fetch the launch nonce (written by WG 0 at its start) and pass it on through LDS")
    A(f"s_mov_b64 exec, 1")
    A(f"s_mov_b32 s72, 0x100000")
    A.label("L_getnonce")
    A(f"buffer_load_dwordx2 v[92:93], v5, s[{sDBG}:{sDBG+3}], 0 offen offset:192 sc1")
    A(f"s_sub_u32 s72, s72, 1")
    A(f"s_cbranch_scc1 L_gotnonce")
    A("s_waitcnt vmcnt(0)")
    A(f"v_cmp_eq_u32 vcc, 0, v93")
    A(f"s_cbranch_vccnz L_getnonce")
    A.label("L_gotnonce")
    A("s_waitcnt vmcnt(0)")
    A(f"v_readfirstlane_b32 s{sH}, v92")
    A(f"v_readfirstlane_b32 s{sH+1}, v93")
    A(f"ds_write_b64 v5, v[92:93] offset:{LDS_N}")
    tags(A)
    A(f"s_mov_b64 exec, -1")
    A.label("L_eA")
    A("s_waitcnt lgkmcnt(0)")
    A(f"s_barrier")
    A(f"ds_read_b128 v[{vQ}:{vQ+3}], v42 offset:{LDS_M}")
    A(f"ds_read_b32 v95, v5 offset:{LDS_N+4}")
    A("s_waitcnt lgkmcnt(1)")
    A(f"v_max3_f32 v14, v{vQ}, v{vQ+1}, v{vQ+2}")
    A(f"v_max_f32 v14, v14, v{vQ+3}")
    A(f"v_sub_f32 v14, v{vMRUN}, v14")
    A(f"v_exp_f32 v14, v14")
    A.nop(1)
    A(f"v_mul_f32 v{vL}, v{vL}, v14")
    A(f"ds_write_b32 v43, v{vL} offset:{LDS_L}")
    for i in range(8):
        for q in range(4):
            A(f"v_mul_f32 v{vO+4*i+q}, v{vO+4*i+q}, v14")
        A(f"ds_write_b128 v{vC+i}, v[{vO+4*i}:{vO+4*i+3}] offset:{LDS_X}")
    A(f"v_mov_b32 v94, 1")
    A("s_waitcnt lgkmcnt(0)")
    A(f"s_barrier")
    if dbg == 1:
        A(f"s_branch L_fin")
    A(f"s_cmp_ge_u32 s{sW}, 3")
    A(f"s_cbranch_scc1 L_fin")
    A(f"s_cmp_eq_u32 s{sW}, 2")
    A(f"s_cbranch_scc1 L_w2")
    if dbg == 2:
        A(f"s_branch L_fin")
    consumer(A, "L_c", stamps, sleep, lpol)
    A.label("L_w2")
    A(f"s_mov_b64 exec, 1")
    if stamps: A(f"s_memrealtime s[{sST+4}:{sST+5}]")
    A(f"buffer_atomic_add v94, v{cFL}, s[{sWS}:{sWS+3}], 0 offen sc0 sc1")
    A("s_waitcnt vmcnt(0)")
    if stamps: A(f"s_memrealtime s[{sST+8}:{sST+9}]")
    A(f"v_cmp_eq_u32 vcc, 63, v94")
    A(f"s_cbranch_vccz L_fin")
    A(f"buffer_store_dword v95, v{cFL}, s[{sWS}:{sWS+3}], 0 offen offset:{FLAG_OFF} sc0 sc1")
    A.label("L_c_end")
    A.label("L_fin")
    if stamps:
        A("s_waitcnt vmcnt(0)")
        A(f"s_memrealtime s[{sST+10}:{sST+11}]")
        A("s_waitcnt lgkmcnt(0)")
        A("s_mov_b64 exec, 1")
        for i in range(6):
            A(f"v_mov_b32 v{16+i}, s{sST+2*i}")
        A("s_getreg_b32 s62, hwreg(HW_REG_XCC_ID)")
        A("v_mov_b32 v22, s62")
        A("v_mov_b32 v23, s72")
        A(f"s_lshl_b32 s62, s2, 3")
        A(f"s_add_u32 s62, s62, s{sW}")
        A(f"s_lshl_b32 s62, s62, 5")
        A(f"s_add_u32 s62, s62, {STAMP_BASE}")
        A(f"v_mov_b32 v1, s62")
        A(f"buffer_store_dwordx4 v[16:19], v1, s[{sWS}:{sWS+3}], 0 offen")
        A(f"buffer_store_dwordx4 v[20:23], v1, s[{sWS}:{sWS+3}], 0 offen offset:16")
    A.label("L_end")
    A("s_endpgm")
    A.c("---- WG 0, wave 0: clear the arrival counters, then publish this launch's nonce")
    A.label("L_mknonce")
    A(f"s_mul_i32 s86, s{sH}, 0x9E3779B9")
    A(f"s_mul_i32 s87, s{sH+1}, 0x7F4A7C15")
    A(f"s_add_u32 s86, s86, s87")
    A(f"s_mul_hi_u32 s87, s{sH}, 0x7F4A7C15")
    A(f"s_add_u32 s86, s86, s87")
    A(f"s_mul_i32 s{sH}, s{sH}, 0x7F4A7C15")
    A(f"s_or_b32 s{sH+1}, s86, 0x80000000")
    A(f"v_mov_b32 v92, s{sH}")
    A(f"v_mov_b32 v93, s{sH+1}")
    A(f"v_mov_b32 v94, 0")
    A(f"v_mul_u32_u24 v95, {CNT_STRIDE}, v{vLANE}")
    A(f"v_add_u32 v95, {CNT_BASE}, v95")
    A(f"s_mov_b64 exec, 15")
    A(f"global_store_dword v95, v94, s[22:23] sc0 sc1")
    A(f"s_waitcnt vmcnt(0)")
    A(f"s_mov_b64 exec, 1")
    A(f"global_store_dwordx2 v94, v[92:93], s[20:21] offset:192 sc0 sc1")
    A(f"s_mov_b64 exec, -1")
    A(f"s_branch L_nonced")
    A.c("---- rare paths (second round, long contexts)")
    A.label("L_again")
    for k in range(3):
        A(f"s_load_dword s{sBT+k}, s[{sBTA}:{sBTA+1}], {(5+k)*1024}")
    A(f"s_add_u32 s{sPB}, s{sPB}, 1280")
    A("s_waitcnt vmcnt(0) lgkmcnt(0)")
    A.nop(8)
    A("s_branch L_round")
    A.label("L_rescale")
    A(f"v_sub_f32 v15, v{vMRUN}, v{vMC}")
    A(f"v_exp_f32 v15, v15")
    A.nop(1)
    for i in range(36):
        A(f"v_mul_f32 v{vO+i}, v{vO+i}, v15")
    A("s_branch L_rescaled")


def kd(name, vgpr, sgpr=102):
    return f""".amdhsa_kernel {name}
  .amdhsa_next_free_vgpr {vgpr}
  .amdhsa_next_free_sgpr {sgpr}
  .amdhsa_accum_offset {vgpr}
  .amdhsa_group_segment_fixed_size 0
  .amdhsa_kernarg_size 64
  .amdhsa_user_sgpr_count 2
  .amdhsa_user_sgpr_kernarg_segment_ptr 1
  .amdhsa_system_sgpr_workgroup_id_x 1
.end_amdhsa_kernel
"""


def gen(**kw):
    A = G()
    k1 = NAME + "_kernel"
    out = HEADER
    out += f"; @launch grid=(256,1,1) block=(512,1,1) lds={LDS_TOTAL}\n"
    out += '.amdgcn_target "amdgcn-amd-amdhsa--gfx950"\n.text\n'
    main_kernel(A, k1, **kw)
    out += "\n".join(A.L) + "\n"
    out += f".fill (8192 - (. - {k1})) / 4, 4, 0xbf810000\n"
    out += '.section .rodata,"a"\n.p2align 6\n' + kd(k1, 256)
    return out


if __name__ == "__main__":
    kw = eval("dict(" + (sys.argv[2] if len(sys.argv) > 2 else "") + ")")
    open(sys.argv[1], "w").write(gen(**kw))
```

```python
import sys, struct

NAME = "standalone__paged_block_table_kv_pagedattention__decode"
KV_BYTES = 4100 * 16384
WS_BYTES = 268697600
GS = 512 << 10
LSE_BASE = 2 << 20
CNT_BASE = (2 << 20) + (128 << 10)
CNT_STRIDE = 4096 + 256
FLAG_OFF = 2048
STAMP_BASE = 4 << 20
NEG = 0xF149F2CA
SCALE = struct.unpack("<I", struct.pack("<f", 1.4426950408889634 / (128 ** 0.5)))[0]
HEADER = open("cdna_kernels/" + NAME + ".s.ref").read().split("; Override launch geometry")[0]
LDS_N = 0
LDS_M = 64
LDS_L = LDS_M + 512
LDS_X = 2048
LDS_XE = LDS_X + 8192
LDS_TOTAL = LDS_XE + 16384


class G:
    def __init__(self):
        self.L = []
    def __call__(self, s):
        self.L.append("  " + s)
    def label(self, s):
        self.L.append(s + ":")
    def c(self, s):
        self.L.append("  ; " + s)
    def nop(self, n):
        while n > 0:
            k = min(n, 16)
            self(f"s_nop {k-1}")
            n -= k


def srd(A, d, lo, nbytes):
    A(f"s_mov_b32 s{d}, s{lo}")
    A(f"s_mov_b32 s{d+1}, s{lo+1}")
    A(f"s_mov_b32 s{d+2}, {nbytes}")
    A(f"s_mov_b32 s{d+3}, 0x20000")


DPPM = "row_mask:0xf bank_mask:0xf"
vLANE, vR, vG = 2, 3, 4
vKOFF, vVOFF, vADDR = 6, 7, 8
vT0, vT1, vNEG, vMRUN, vMC = 9, 10, 11, 12, 13
vQ = 16
vC = 24
vPA, vPB, vPC = 40, 44, 48
vONE = 52
vO = 56
vL = 88
vK = 96
vV = 176
sW, sPR, sB, sSI, sWI = 3, 4, 5, 6, 7
sK, sV, sWS, sQ, sOUT, sDBG = 24, 28, 32, 36, 40, 44
sBT = 48
sLL = 53
sBTA = 54
sEFF, s8K, sSC, sSELLO, sSELHI = 56, 57, 58, 59, 60
sPB = 61
sOFF, sNV = 66, 71
sMORE = 76
sKVH = 77
sH = 84
sST = 90
cA, cB, cOUT, cFL, cLS, cG, cACC = 96, 97, 98, 99, 100, 104, 120


def tagword(A, dst, tmp):
    A(f"v_and_b32 v{tmp}, 2, v{vLANE}")
    A(f"v_cmp_eq_u32 vcc, 0, v{tmp}")
    A(f"v_mov_b32 v{dst}, s{sH}")
    A(f"v_mov_b32 v{tmp}, s{sH+1}")
    A(f"v_cndmask_b32 v{dst}, v{tmp}, v{dst}, vcc")
    A(f"v_and_b32 v{tmp}, 1, v{vLANE}")
    A(f"v_lshlrev_b32 v{tmp}, 2, v{tmp}")
    A(f"v_lshrrev_b32 v{dst}, v{tmp}, v{dst}")
    A(f"v_and_b32 v{dst}, 0x0f0f0f0f, v{dst}")


def consumer_addr(A):
    A.c("final-combine addresses: line si of the group, half = wave")
    A(f"s_and_b32 s62, s2, 3")
    A(f"s_mul_i32 s63, s62, {CNT_STRIDE}")
    A(f"s_add_u32 s63, s63, {CNT_BASE}")
    A(f"v_mov_b32 v{cFL}, s63")
    A(f"s_mul_i32 s63, s62, {GS}")
    A(f"s_lshl_b32 s64, s{sSI}, 7")
    A(f"s_add_u32 s63, s63, s64")
    A(f"s_lshl_b32 s64, s{sW}, 6")
    A(f"s_add_u32 s63, s63, s64")
    A(f"v_lshrrev_b32 v124, 2, v{vLANE}")
    A(f"v_and_b32 v125, 3, v{vLANE}")
    A(f"v_lshlrev_b32 v{cA}, 13, v124")
    A(f"v_lshl_add_u32 v{cA}, v125, 4, v{cA}")
    A(f"v_add_u32 v{cA}, s63, v{cA}")
    A(f"s_mov_b32 s8, 0x20000")
    A(f"s_mov_b32 s9, 0x40000")
    A(f"s_mov_b32 s10, 0x60000")
    A(f"s_mov_b32 s11, 0x05010400")
    A(f"s_lshr_b32 s64, s{sSI}, 5")
    A(f"s_lshl_b32 s67, s{sPR}, 1")
    A(f"s_add_u32 s67, s67, s64")
    A(f"s_lshl_b32 s67, s67, 3")
    A(f"s_lshl_b32 s66, s{sW}, 2")
    A(f"s_add_u32 s67, s67, s66")
    A(f"s_lshr_b32 s66, s2, 1")
    A(f"s_xor_b32 s66, s66, s64")
    A(f"s_and_b32 s66, s66, 1")
    A(f"s_lshl_b32 s66, s66, 5")
    A(f"s_add_u32 s67, s67, s66")
    A(f"s_lshl_b32 s67, s67, 7")
    A(f"s_bfe_u32 s66, s{sSI}, 0x20001")
    A(f"s_lshl_b32 s66, s66, 5")
    A(f"s_add_u32 s67, s67, s66")
    A(f"s_bfe_u32 s66, s{sSI}, 0x20003")
    A(f"s_lshl_b32 s66, s66, 1")
    A(f"s_add_u32 s67, s67, s66")
    A(f"s_and_b32 s66, s{sSI}, 1")
    A(f"s_add_u32 s67, s67, s66")
    A(f"v_lshlrev_b32 v{cOUT}, 7, v125")
    A(f"v_lshrrev_b32 v124, 4, v{vLANE}")
    A(f"v_lshl_add_u32 v{cOUT}, v124, 3, v{cOUT}")
    A(f"v_add_u32 v{cOUT}, s67, v{cOUT}")
    A(f"v_lshlrev_b32 v{cOUT}, 1, v{cOUT}")


def consumer(A, lab, stamps, sleep, lpol):
    so = ["0", "s8", "s9", "s10"]
    t0, t1, t2, t3 = 124, 125, 126, 127
    pG = [64, 66, 68, 70]
    def P(x): return f"s[{x}:{x+1}]"
    def ld_g(j):
        r = cG + 4*j
        A(f"buffer_load_dwordx4 v[{r}:{r+3}], v{cA}, s[{sWS}:{sWS+3}], {so[j]} offen {lpol}")
    def chk_g(j):
        r = cG + 4*j
        A(f"v_perm_b32 v{t0}, v{r+1}, v{r}, s11")
        A(f"v_perm_b32 v{t1}, v{r+3}, v{r+2}, s11")
        A(f"v_perm_b32 v{t2}, v{t1}, v{t0}, s{sSELHI}")
        A(f"v_perm_b32 v{cLS+j}, v{t1}, v{t0}, s{sSELLO}")
        A(f"v_and_b32 v{t2}, 0x0f0f0f0f, v{t2}")
        A(f"v_cmp_ne_u32_e64 {P(pG[j])}, v{t2}, v{cB}")
        for q in range(4):
            A(f"v_and_b32 v{r+q}, s80, v{r+q}")
    A(f"s_mov_b32 s72, 0x100000")
    A.c("wait for the group's go flag (a hint only: the tags decide)")
    A(f"s_mov_b64 exec, 1")
    A.label(f"{lab}_flag")
    A(f"buffer_load_dword v{t0}, v{cFL}, s[{sWS}:{sWS+3}], 0 offen offset:{FLAG_OFF} sc1")
    A(f"s_sub_u32 s72, s72, 1")
    A(f"s_cbranch_scc1 {lab}_end")
    A("s_waitcnt vmcnt(0)")
    A(f"v_cmp_eq_u32 vcc, s{sH+1}, v{t0}")
    if sleep:
        A(f"s_cbranch_vccnz {lab}_go")
        A(f"s_sleep {sleep}")
        A(f"s_branch {lab}_flag")
    else:
        A(f"s_cbranch_vccz {lab}_flag")
    A.label(f"{lab}_go")
    if stamps:
        A(f"s_memrealtime s[{sST+4}:{sST+5}]")
        A(f"s_mov_b32 s72, 0x100000")
    A(f"s_mov_b64 exec, -1")
    for j in range(4): ld_g(j)
    for j in range(4):
        A(f"s_waitcnt vmcnt({3-j})")
        chk_g(j)
    A.label(f"{lab}_test")
    A(f"s_or_b64 s[74:75], {P(pG[0])}, {P(pG[1])}")
    A(f"s_or_b64 s[62:63], {P(pG[2])}, {P(pG[3])}")
    A(f"s_or_b64 s[74:75], s[74:75], s[62:63]")
    A(f"s_cbranch_scc1 {lab}_retry")
    A(f"s_mov_b64 exec, -1")
    if stamps:
        A(f"s_memrealtime s[{sST+8}:{sST+9}]")
    L = cLS
    A(f"v_max3_f32 v{t0}, v{L}, v{L+1}, v{L+2}")
    A(f"v_max_f32 v{t0}, v{t0}, v{L+3}")
    A.nop(2)
    A(f"v_max_f32_dpp v{t0}, v{t0}, v{t0} row_ror:4 {DPPM}")
    A.nop(2)
    A(f"v_max_f32_dpp v{t0}, v{t0}, v{t0} row_ror:8 {DPPM}")
    A(f"v_mov_b32 v{t1}, v{t0}")
    A.nop(2)
    A(f"v_permlane16_swap_b32 v{t0}, v{t1}")
    A(f"v_max_f32 v{t0}, v{t0}, v{t1}")
    A(f"v_mov_b32 v{t1}, v{t0}")
    A.nop(2)
    A(f"v_permlane32_swap_b32 v{t0}, v{t1}")
    A(f"v_max_f32 v{t0}, v{t0}, v{t1}")
    for j in range(4):
        A(f"v_sub_f32 v{L+j}, v{L+j}, v{t0}")
    for j in range(4):
        A(f"v_exp_f32 v{L+j}, v{L+j}")
    acc = cACC
    def wsum(j):
        op = "v_mul_f32" if j == 0 else "v_fmac_f32"
        for q in range(4):
            A(f"{op} v{acc+q}, v{L+j}, v{cG+4*j+q}")
    wsum(0)
    A(f"v_add_f32 v{t1}, v{L}, v{L+1}")
    A(f"v_add_f32 v{t2}, v{L+2}, v{L+3}")
    A(f"v_add_f32 v{t1}, v{t1}, v{t2}")
    wsum(1)
    A(f"v_add_f32_dpp v{t1}, v{t1}, v{t1} row_ror:4 {DPPM}")
    wsum(2)
    A(f"v_add_f32_dpp v{t1}, v{t1}, v{t1} row_ror:8 {DPPM}")
    wsum(3)
    A(f"v_mov_b32 v{t2}, v{t1}")
    A(f"v_permlane16_swap_b32 v{acc}, v{acc+1}")
    A(f"v_permlane16_swap_b32 v{acc+2}, v{acc+3}")
    A(f"v_permlane16_swap_b32 v{t1}, v{t2}")
    A(f"v_add_f32 v{acc}, v{acc}, v{acc+1}")
    A(f"v_add_f32 v{acc+2}, v{acc+2}, v{acc+3}")
    A(f"v_add_f32 v{t1}, v{t1}, v{t2}")
    A(f"v_mov_b32 v{t2}, v{t1}")
    A(f"v_permlane32_swap_b32 v{acc}, v{acc+2}")
    A.nop(1)
    A(f"v_permlane32_swap_b32 v{t1}, v{t2}")
    A(f"v_add_f32 v{acc}, v{acc}, v{acc+2}")
    A(f"v_add_f32 v{t1}, v{t1}, v{t2}")
    A(f"v_rcp_f32 v{t1}, v{t1}")
    A(f"v_add_f32_dpp v{acc}, v{acc}, v{acc} row_ror:4 {DPPM}")
    A(f"s_mov_b32 s62, 0x000f000f")
    A(f"s_mov_b32 s63, 0x000f000f")
    A(f"v_add_f32_dpp v{acc}, v{acc}, v{acc} row_ror:8 {DPPM}")
    A(f"v_mul_f32 v{acc}, v{acc}, v{t1}")
    A(f"v_cvt_pk_bf16_f32 v{acc}, v{acc}, v{acc}")
    A(f"s_mov_b64 exec, s[62:63]")
    A(f"buffer_store_short v{acc}, v{cOUT}, s[{sOUT}:{sOUT+3}], 0 offen {OPOL[0]}")
    A(f"s_branch {lab}_end")
    A.label(f"{lab}_retry")
    A(f"s_sub_u32 s72, s72, 1")
    A(f"s_cbranch_scc1 {lab}_end")
    A.c("a 4-lane group (64 B of one producer) is accepted or re-read as a whole")
    A(f"s_mov_b32 s62, 0x11111111")
    A(f"s_mov_b32 s63, 0x11111111")
    for j in range(4):
        A(f"s_lshr_b64 s[74:75], {P(pG[j])}, 2")
        A(f"s_or_b64 {P(pG[j])}, {P(pG[j])}, s[74:75]")
        A(f"s_lshr_b64 s[74:75], {P(pG[j])}, 1")
        A(f"s_or_b64 {P(pG[j])}, {P(pG[j])}, s[74:75]")
        A(f"s_and_b64 {P(pG[j])}, {P(pG[j])}, s[62:63]")
        A(f"s_mul_i32 s{pG[j]}, s{pG[j]}, 15")
        A(f"s_mul_i32 s{pG[j]+1}, s{pG[j]+1}, 15")
        A(f"s_mov_b64 exec, {P(pG[j])}")
        A(f"s_cbranch_execz {lab}_s{j+1}")
        ld_g(j)
        A.label(f"{lab}_s{j+1}")
    A("s_waitcnt vmcnt(0)")
    for j in range(4):
        A(f"s_mov_b64 exec, {P(pG[j])}")
        chk_g(j)
    A(f"s_branch {lab}_test")


def main_kernel(A, name, pol="nt", stamps=False, sleep=2, spol="sc0 sc1", lpol="sc1", b1pos=3, v4pos=(0, 1, 2, 3), dbg=0, half=0):
    A.L.append(f".globl {name}")
    A.L.append(".p2align 8")
    A.L.append(f".type {name},@function")
    A.label(name)
    A("s_load_dwordx16 s[8:23], s[0:1], 0")
    A("s_cmp_ge_u32 s2, 256")
    A("s_cbranch_scc1 L_end")
    A.c("pull this kernel's code into L2 (one 1 KiB piece per wave)")
    A("s_getpc_b64 s[62:63]")
    A.label("L_pc")
    A("v_lshlrev_b32 v1, 4, v0")
    A(f"s_sub_u32 s62, s62, L_pc-{name}")
    A(f"s_subb_u32 s63, s63, 0")
    A(f"global_load_dwordx4 v[{vC}:{vC+3}], v1, s[62:63]")
    if stamps:
        A(f"s_memrealtime s[{sST}:{sST+1}]")
    A(f"s_memrealtime s[{sH}:{sH+1}]")
    A("v_lshrrev_b32 v1, 6, v0")
    A(f"v_and_b32 v{vLANE}, 63, v0")
    A(f"v_readfirstlane_b32 s{sW}, v1")
    A(f"v_and_b32 v{vR}, 15, v0")
    A(f"v_lshrrev_b32 v{vG}, 4, v{vLANE}")
    A(f"s_and_b32 s{sPR}, s2, 1")
    A(f"s_lshr_b32 s{sB}, s2, 1")
    A(f"s_xor_b32 s{sB}, s{sB}, s{sW}")
    A(f"s_and_b32 s{sB}, s{sB}, 1")
    A(f"s_lshr_b32 s{sSI}, s2, 2")
    A(f"s_lshr_b32 s{sWI}, s{sW}, 1")
    A(f"s_lshl_b32 s{sWI}, s{sWI}, 6")
    A(f"s_mul_i32 s62, s{sB}, 63")
    A(f"s_xor_b32 s62, s62, s{sSI}")
    A(f"s_add_u32 s{sWI}, s{sWI}, s62")
    A(f"s_lshl_b32 s62, s{sB}, 11")
    A(f"s_add_u32 s62, s62, s{sWI}")
    A(f"s_lshl_b32 s64, s62, 2")
    A(f"s_lshl_b32 s65, s{sB}, 2")
    A("s_waitcnt lgkmcnt(0)")
    A(f"s_add_u32 s{sBTA}, s14, s64")
    A(f"s_addc_u32 s{sBTA+1}, s15, 0")
    A(f"s_load_dword s{sEFF}, s[16:17], s65")
    for k in (4, 0, 1, 2, 3):
        A(f"s_load_dword s{sBT+k}, s[{sBTA}:{sBTA+1}], {k*1024}")
    A(f"s_or_b32 s62, s2, s{sW}")
    A(f"s_cbranch_scc0 L_mknonce")
    A.label("L_nonced")
    A(f"s_and_b32 s{sKVH}, s{sW}, 1")
    A(f"s_lshl_b32 s62, s{sPR}, 1")
    A(f"s_add_u32 s{sKVH}, s{sKVH}, s62")
    A(f"v_lshrrev_b32 v5, 1, v{vR}")
    A(f"v_lshlrev_b32 v{vKOFF}, 10, v5")
    A(f"v_lshl_add_u32 v{vKOFF}, v{vG}, 5, v{vKOFF}")
    A(f"v_and_b32 v5, 1, v{vR}")
    A(f"v_lshl_add_u32 v{vKOFF}, v5, 4, v{vKOFF}")
    A(f"s_lshl_b32 s66, s{sKVH}, 8")
    A(f"v_add_u32 v{vKOFF}, s66, v{vKOFF}")
    A(f"v_lshlrev_b32 v{vVOFF}, 11, v{vG}")
    A(f"v_lshl_add_u32 v{vVOFF}, v{vR}, 4, v{vVOFF}")
    A(f"v_add_u32 v{vVOFF}, s66, v{vVOFF}")
    A(f"v_and_b32 v5, 7, v{vR}")
    A(f"v_lshlrev_b32 v14, 8, v5")
    A(f"v_lshl_add_u32 v14, v{vG}, 5, v14")
    A(f"v_lshrrev_b32 v5, 3, v{vR}")
    A(f"v_lshl_add_u32 v14, v5, 4, v14")
    A(f"s_lshl_b32 s67, s{sB}, 13")
    A(f"s_lshl_b32 s68, s{sKVH}, 11")
    A(f"s_add_u32 s67, s67, s68")
    srd(A, sK, 10, KV_BYTES)
    srd(A, sQ, 8, 16384)
    A(f"s_movk_i32 s{s8K}, 0x2000")
    A(f"s_mov_b32 s{sPB}, s{sWI}")
    A("s_waitcnt lgkmcnt(0)")
    if stamps:
        A(f"s_memrealtime s[{sST+2}:{sST+3}]")
    A.c("eff = cl<=0 ? 32768 : min(cl, 32768);  cl<=0: Q reads as zero (uniform softmax over all keys)")
    A(f"s_cmp_le_i32 s{sEFF}, 0")
    A(f"s_cselect_b32 s67, 0x80000000, s67")
    A(f"s_cselect_b32 s{sEFF}, 0x8000, s{sEFF}")
    A(f"s_min_i32 s{sEFF}, s{sEFF}, 0x8000")
    A(f"v_add_u32 v14, s67, v14")
    A(f"buffer_load_dwordx4 v[{vQ}:{vQ+3}], v14, s[{sQ}:{sQ+3}], 0 offen")
    A(f"buffer_load_dwordx4 v[{vQ+4}:{vQ+7}], v14, s[{sQ}:{sQ+3}], 0 offen offset:128")
    A.label("L_round")
    ks = [4, 0, 1, 2, 3]
    A(f"s_lshl_b32 s62, s{sPB}, 4")
    A(f"s_sub_i32 s62, s{sEFF}, s62")

    def slot_setup(s):
        k = ks[s]
        A(f"s_sub_i32 s{sNV+s}, s62, {k*4096}")
        A(f"s_lshl_b32 s{sOFF+s}, s{sBT+k}, 14")
        A(f"s_cmp_gt_i32 s{sNV+s}, 0")
        A(f"s_cselect_b32 s{sOFF+s}, s{sOFF+s}, 0x80000000")

    def kload(s):
        A(f"v_add_u32 v{vADDR}, s{sOFF+s}, v{vKOFF}")
        for n, (so, o) in enumerate([("0", 0), ("0", 128), (f"s{s8K}", 0), (f"s{s8K}", 128)]):
            r = vK + 16*s + 4*n
            A(f"buffer_load_dwordx4 v[{r}:{r+3}], v{vADDR}, s[{sK}:{sK+3}], {so} offen offset:{o} {pol}")

    def vload(s):
        A(f"v_add_u32 v{vADDR}, s{sOFF+s}, v{vVOFF}")
        for n, (so, o) in enumerate([("0", 0), ("0", 1024), (f"s{s8K}", 0), (f"s{s8K}", 1024)]):
            r = vV + 16*s + 4*n
            A(f"buffer_load_dwordx4 v[{r}:{r+3}], v{vADDR}, s[{sV}:{sV+3}], {so} offen offset:{o} {pol}")

    def qk_mfma(s):
        c = vC + 8*(s & 1)
        k = vK + 16*s
        A(f"v_mfma_f32_16x16x32_bf16 v[{c}:{c+3}], v[{k}:{k+3}], v[{vQ}:{vQ+3}], 0")
        A(f"v_mfma_f32_16x16x32_bf16 v[{c+4}:{c+7}], v[{k+8}:{k+11}], v[{vQ}:{vQ+3}], 0")
        A(f"v_mfma_f32_16x16x32_bf16 v[{c}:{c+3}], v[{k+4}:{k+7}], v[{vQ+4}:{vQ+7}], v[{c}:{c+3}]")
        A(f"v_mfma_f32_16x16x32_bf16 v[{c+4}:{c+7}], v[{k+12}:{k+15}], v[{vQ+4}:{vQ+7}], v[{c+4}:{c+7}]")

    def qk_post(s):
        c = vC + 8*(s & 1)
        x = vK + 16*s
        A(f"s_sub_i32 s63, s{sNV+s}, 8")
        A(f"v_cmp_gt_i32_e64 s[80:81], s{sNV+s}, v{vT0}")
        A(f"v_cmp_gt_i32_e64 s[82:83], s{sNV+s}, v{vT1}")
        A(f"v_add_f32_dpp v{x}, v{c+1}, v{c} row_ror:8 {DPPM}")
        A(f"v_add_f32_dpp v{x+1}, v{c+3}, v{c+2} row_ror:8 {DPPM}")
        A(f"v_add_f32_dpp v{x+2}, v{c+5}, v{c+4} row_ror:8 {DPPM}")
        A(f"v_add_f32_dpp v{x+3}, v{c+7}, v{c+6} row_ror:8 {DPPM}")
        A(f"v_mul_f32 v{x}, s{sSC}, v{x}")
        A(f"v_mul_f32 v{x+1}, s{sSC}, v{x+1}")
        A(f"v_cndmask_b32_e64 v{x}, v{vNEG}, v{x}, s[80:81]")
        A(f"v_cndmask_b32_e64 v{x+1}, v{vNEG}, v{x+1}, s[82:83]")
        A(f"v_cmp_gt_i32_e64 s[80:81], s63, v{vT0}")
        A(f"v_cmp_gt_i32_e64 s[82:83], s63, v{vT1}")
        A(f"v_mul_f32 v{x+2}, s{sSC}, v{x+2}")
        A(f"v_mul_f32 v{x+3}, s{sSC}, v{x+3}")
        A(f"v_cndmask_b32_e64 v{x+2}, v{vNEG}, v{x+2}, s[80:81]")
        A(f"v_cndmask_b32_e64 v{x+3}, v{vNEG}, v{x+3}, s[82:83]")
        if s == 0:
            A(f"v_max3_f32 v14, v{x}, v{x+1}, v{x+2}")
            A(f"v_max_f32 v14, v14, v{x+3}")
        else:
            A(f"v_max3_f32 v14, v14, v{x}, v{x+1}")
            A(f"v_max3_f32 v14, v14, v{x+2}, v{x+3}")

    issued = [0]
    def W(idx):
        A(f"s_waitcnt vmcnt({issued[0] - 1 - idx})")
    def KL(s):
        kload(s); issued[0] += 4
    def VL(s):
        vload(s); issued[0] += 4

    for s in range(5):
        slot_setup(s)
        KL(s)
    A.c("round flags: MORE = another round follows; LL = late wave in its last round")
    A(f"s_cmp_gt_i32 s62, {5*4096}")
    A(f"s_cselect_b32 s{sMORE}, 1, 0")
    A(f"s_cselect_b32 s63, 0, s{sW}")
    A(f"s_cmp_ge_u32 s63, 4")
    A(f"s_cselect_b32 s{sLL}, 1, 0")
    srd(A, sV, 12, KV_BYTES)
    srd(A, sWS, 22, WS_BYTES)
    srd(A, sOUT, 18, 16384)
    srd(A, sDBG, 20, 256)
    A(f"s_mov_b32 s{sSC}, {SCALE:#x}")
    A(f"s_mov_b32 s{sSELLO}, 0x05040100")
    A(f"s_mov_b32 s{sSELHI}, 0x07060302")
    A(f"v_lshlrev_b32 v{vT0}, 1, v{vG}")
    A(f"v_or_b32 v{vT1}, 1, v{vT0}")
    A(f"v_mov_b32 v{vNEG}, {NEG:#x}")
    A(f"v_mov_b32 v{vONE}, 0x3f803f80")
    for i in range(1, 4):
        A(f"v_mov_b32 v{vONE+i}, v{vONE}")
    A(f"s_and_b32 s64, s{sW}, 1")
    A(f"s_lshl_b32 s64, s64, 8")
    A(f"v_lshlrev_b32 v42, 4, v{vR}")
    A(f"v_add_u32 v42, s64, v42")
    A(f"s_lshr_b32 s64, s{sW}, 1")
    A(f"s_lshl_b32 s64, s64, 2")
    A(f"v_add_u32 v43, s64, v42")
    A(f"v_and_b32 v1, 0x17f, v42")
    A(f"v_mov_b32 v5, 0")
    A(f"s_cmp_lg_u32 s{sPB}, s{sWI}")
    A(f"s_cbranch_scc1 L_noinit")
    A(f"v_mov_b32 v{vMRUN}, v{vNEG}")
    for i in range(36):
        A(f"v_mov_b32 v{vO+i}, 0")
    A.label("L_noinit")
    W(3); qk_mfma(0)
    VL(0)
    W(7); qk_mfma(1); qk_post(0)
    W(11); qk_mfma(2); qk_post(1)
    VL(1)
    W(15); qk_mfma(3); qk_post(2)
    VL(2)
    W(19); qk_mfma(4); qk_post(3)
    VL(3)
    qk_post(4)
    if v4pos is None:
        VL(4)
        v4pos = (9, 9, 9, 9)
    A(f"v_mov_b32 v15, v14")
    A.nop(2)
    A(f"v_permlane16_swap_b32 v14, v15")
    A(f"v_max_f32 v14, v14, v15")
    A(f"v_mov_b32 v15, v14")
    A.nop(2)
    A(f"v_permlane32_swap_b32 v14, v15")
    A(f"v_max3_f32 v{vMC}, v14, v15, v{vMRUN}")
    EM = vK + 4
    A(f"s_cmp_eq_u32 s{sLL}, 0")
    A(f"s_cbranch_scc1 L_ownmax")
    A.c("late wave, last round: common max of the head's four waves")
    A(f"ds_write_b32 v43, v{vMC} offset:{LDS_M}")
    A("s_waitcnt lgkmcnt(0)")
    A("s_barrier")
    A(f"ds_read_b128 v[{EM}:{EM+3}], v42 offset:{LDS_M}")
    A(f"ds_read_b64 v[92:93], v5 offset:{LDS_N}")
    A("s_waitcnt lgkmcnt(1)")
    A(f"v_max3_f32 v{vMC}, v{EM}, v{EM+1}, v{EM+2}")
    A(f"v_max_f32 v{vMC}, v{vMC}, v{EM+3}")
    A("s_waitcnt lgkmcnt(0)")
    A(f"v_readfirstlane_b32 s{sH}, v92")
    A(f"v_readfirstlane_b32 s{sH+1}, v93")
    A.label("L_ownmax")
    A(f"s_cmp_lg_u32 s{sPB}, s{sWI}")
    A(f"s_cbranch_scc1 L_rescale")
    A.label("L_rescaled")
    A(f"v_mov_b32 v{vMRUN}, v{vMC}")
    A(f"v_add_u32 v{vADDR}, s{sOFF+4}, v{vVOFF}")
    v4 = [("0", 0), ("0", 1024), (f"s{s8K}", 0), (f"s{s8K}", 1024)]
    pdst = {0: vPA, 1: vPB, 2: vPB+2, 3: vPC, 4: vPC+2}
    for s in range(5):
        x = vK + 16*s
        for n in range(4):
            if v4pos[n] == s:
                r = vV + 64 + 4*n
                A(f"buffer_load_dwordx4 v[{r}:{r+3}], v{vADDR}, s[{sV}:{sV+3}], {v4[n][0]} offen offset:{v4[n][1]} {pol}")
                issued[0] += 1
        for q in range(4):
            A(f"v_sub_f32 v{x+q}, v{x+q}, v{vMC}")
        for q in range(4):
            A(f"v_exp_f32 v{x+q}, v{x+q}")
        if s > 0:
            xp = vK + 16*(s-1)
            A(f"v_cvt_pk_bf16_f32 v{pdst[s-1]}, v{xp}, v{xp+1}")
            A(f"v_cvt_pk_bf16_f32 v{pdst[s-1]+1}, v{xp+2}, v{xp+3}")
    A(f"v_mfma_f32_16x16x16_bf16 v[{vL}:{vL+3}], v[{vONE}:{vONE+1}], v[{vPA}:{vPA+1}], v[{vL}:{vL+3}]")
    xp = vK + 64
    A(f"v_cvt_pk_bf16_f32 v{pdst[4]}, v{xp}, v{xp+1}")
    A(f"v_cvt_pk_bf16_f32 v{pdst[4]+1}, v{xp+2}, v{xp+3}")
    def addr_block():
        A(f"v_lshlrev_b32 v33, 4, v{vLANE}")
        A(f"s_and_b32 s62, s{sW}, 3")
        A(f"s_lshl_b32 s63, s62, 11")
        A(f"v_add_u32 v37, s63, v33")
        A(f"v_xor_b32 v32, 0x1000, v37")
        A(f"s_lshl_b32 s63, s62, 12")
        A(f"v_add_u32 v39, s63, v33")
        A(f"s_lshl_b32 s62, s62, 2")
        A(f"v_mov_b32 v36, s62")
        A(f"v_xor_b32 v15, 8, v36")
        A(f"s_and_b32 s62, s{sW}, 1")
        A(f"s_bfe_u32 s64, s{sW}, 0x10001")
        A(f"s_lshl_b32 s63, s62, 12")
        A(f"s_lshl_b32 s65, s64, 11")
        A(f"s_add_u32 s63, s63, s65")
        A(f"v_add_u32 v38, s63, v33")
        A(f"s_and_b32 s65, s2, 3")
        A(f"s_mul_i32 s65, s65, {GS}")
        A(f"s_lshl_b32 s66, s{sSI}, 13")
        A(f"s_add_u32 s65, s65, s66")
        A(f"v_add_u32 v34, s65, v38")
        A(f"s_movk_i32 s80, 0xf000")
    addr_block()
    A(f"v_mfma_f32_16x16x32_bf16 v[{vL}:{vL+3}], v[{vONE}:{vONE+3}], v[{vPB}:{vPB+3}], v[{vL}:{vL+3}]")
    A(f"v_mfma_f32_16x16x32_bf16 v[{vL}:{vL+3}], v[{vONE}:{vONE+3}], v[{vPC}:{vPC+3}], v[{vL}:{vL+3}]")

    def perms(s, dst, stride, sub, irange=range(8)):
        v = vV + 16*s
        for i in irange:
            sel = sSELLO if (i & 1) == 0 else sSELHI
            for u in range(2):
                r0 = v + 8*u + (i >> 1)
                r1 = v + 8*u + 4 + (i >> 1)
                A(f"v_perm_b32 v{dst + stride*i + sub + u}, v{r1}, v{r0}, s{sel}")

    ES = vV
    LW = vC
    def B1(pos):
        if pos == b1pos:
            A(f"s_cmp_eq_u32 s{sLL}, 0")
            A(f"s_cbranch_scc1 L_nob1")
            A("s_waitcnt lgkmcnt(0)")
            A(f"s_barrier")
            A(f"ds_read_b128 v[92:95], v1 offset:{LDS_L}")
            A(f"ds_read_b128 v[{ES}:{ES+3}], v38 offset:{LDS_XE}")
            A(f"ds_read_b128 v[{ES+4}:{ES+7}], v38 offset:{LDS_XE+1024}")
            A(f"ds_read_b128 v[{ES+8}:{ES+11}], v38 offset:{LDS_XE+8192}")
            A(f"ds_read_b128 v[{ES+12}:{ES+15}], v38 offset:{LDS_XE+8192+1024}")
            A.label("L_nob1")

    def pack(i0):
        for q in range(4):
            A(f"v_mov_b32_dpp v{vO+4*i0+q}, v{vO+4*i0+4+q} row_ror:8 row_mask:0xf bank_mask:0xc")

    tA, tB, tC = vK, vK + 16, vK + 48
    W(23)
    perms(0, tA, 2, 0)
    A(f"s_cmp_eq_u32 s{sLL}, 0")
    A(f"s_cbranch_scc1 L_nolw")
    A(f"ds_write_b32 v43, v{vL} offset:{LDS_L}")
    A.label("L_nolw")
    for i in range(8):
        o = vO + 4*i
        A(f"v_mfma_f32_16x16x16_bf16 v[{o}:{o+3}], v[{tA+2*i}:{tA+2*i+1}], v[{vPA}:{vPA+1}], v[{o}:{o+3}]")
    tagword(A, LW+5, LW+7)
    A(f"v_mov_b32 v{LW+6}, v{vMRUN}")
    A(f"v_mov_b32_dpp v{LW+6}, v{vMRUN} row_ror:8 row_mask:0xf bank_mask:0xc")
    W(27)
    B1(1)
    perms(1, tB, 4, 0)
    W(31)
    B1(2)
    perms(2, tB, 4, 2)
    for i in range(8):
        o = vO + 4*i
        A(f"v_mfma_f32_16x16x32_bf16 v[{o}:{o+3}], v[{tB+4*i}:{tB+4*i+3}], v[{vPB}:{vPB+3}], v[{o}:{o+3}]")
    W(35)
    B1(3)
    perms(3, tC, 4, 0)
    A(f"s_cmp_eq_u32 s{sLL}, 0")
    A(f"s_cbranch_scc1 L_tail_other")
    A.c("---- late wave, last round")
    assert b1pos in (1, 2, 3)
    for q in range(4):
        A(f"s_mov_b32 s{86+q}, {0x0c0c0000 | ((4+q) << 8) | q:#x}")
    A("s_waitcnt lgkmcnt(4)")
    A(f"v_add_f32 v92, v92, v93")
    A(f"v_add_f32 v94, v94, v95")
    A(f"v_add_f32 v92, v92, v94")
    A(f"v_rcp_f32 v{LW+4}, v92")
    A(f"v_log_f32 v{LW+7}, v92")
    A(f"v_mov_b32 v14, 1")
    A("s_waitcnt lgkmcnt(0)")
    for q in range(8):
        A(f"v_add_f32 v{ES+q}, v{ES+q}, v{ES+8+q}")
    A(f"v_add_f32 v{LW+6}, v{LW+6}, v{LW+7}")
    for q in range(8):
        A(f"v_mul_f32 v{ES+q}, v{ES+q}, v{LW+4}")
    for q in range(4):
        A(f"v_perm_b32 v{LW+q}, v{LW+5}, v{LW+6}, s{86+q}")
    A(f"s_cmp_ge_u32 s{sW}, 6")
    A(f"s_cbranch_scc1 L_tail_e1")
    R = vK
    def M(i):
        o = vO + 4*i
        A(f"v_mfma_f32_16x16x32_bf16 v[{o}:{o+3}], v[{tC+4*i}:{tC+4*i+3}], v[{vPC}:{vPC+3}], v[{o}:{o+3}]")
    def PM(i):
        perms(4, tC, 4, 2, [i])
    def late_tail(e):
        od = [4*(1-e) + x for x in range(4)] + [4*e + x for x in range(4)]
        W(39)
        if stamps: A(f"s_memrealtime s[{sST+6}:{sST+7}]")
        PM(od[0]); PM(od[1])
        for x in range(5):
            PM(od[x+2]); M(od[x])
        pack(od[0])
        A(f"ds_write_b128 v37, v[{vO+4*od[0]}:{vO+4*od[0]+3}] offset:{LDS_X}")
        PM(od[7]); M(od[5]); M(od[6])
        pack(od[2])
        M(od[7])
        A(f"ds_write_b128 v37, v[{vO+4*od[2]}:{vO+4*od[2]+3}] offset:{LDS_X+1024}")
        A(f"ds_write_b32 v36, v14 offset:{LDS_N+16}")
        A(f"ds_read_b32 v14, v15 offset:{LDS_N+16}")
        A(f"ds_read_b128 v[{R}:{R+3}], v32 offset:{LDS_X}")
        A(f"ds_read_b128 v[{R+4}:{R+7}], v32 offset:{LDS_X+1024}")
        pack(od[4])
        for q in range(4):
            A(f"v_fmac_f32 v{ES+q}, v{vO+4*od[4]+q}, v{LW+4}")
        pack(od[6])
        for q in range(4):
            A(f"v_fmac_f32 v{ES+4+q}, v{vO+4*od[6]+q}, v{LW+4}")
    late_tail(0)
    A(f"s_branch L_tail_join")
    A.label("L_tail_e1")
    late_tail(1)
    A.label("L_tail_join")
    if stamps:
        A("s_waitcnt lgkmcnt(0)")
    else:
        A("s_waitcnt lgkmcnt(2)")
    A(f"v_cmp_eq_u32 vcc, 0, v14")
    A(f"s_cbranch_vccz L_paired")
    A.label("L_pair")
    A(f"ds_read_b32 v14, v15 offset:{LDS_N+16}")
    A(f"ds_read_b128 v[{R}:{R+3}], v32 offset:{LDS_X}")
    A(f"ds_read_b128 v[{R+4}:{R+7}], v32 offset:{LDS_X+1024}")
    A("s_waitcnt lgkmcnt(2)")
    A(f"v_cmp_eq_u32 vcc, 0, v14")
    A(f"s_cbranch_vccnz L_pair")
    A.label("L_paired")
    for n in range(2):
        A(f"s_waitcnt lgkmcnt({1-n})")
        for q in range(4):
            A(f"v_fmac_f32 v{ES+4*n+q}, v{R+4*n+q}, v{LW+4}")
        for q in range(4):
            A(f"v_and_or_b32 v{ES+4*n+q}, v{ES+4*n+q}, s80, v{LW+q}")
        A(f"buffer_store_dwordx4 v[{ES+4*n}:{ES+4*n+3}], v34, s[{sWS}:{sWS+3}], 0 offen offset:{1024*n} {spol}")
    if stamps: A(f"s_memrealtime s[{sST+4}:{sST+5}]")
    A(f"s_branch L_fin")
    A.label("L_tail_other")
    W(39)
    if stamps: A(f"s_memrealtime s[{sST+6}:{sST+7}]")
    PM(0); PM(1)
    for i in range(8):
        if i + 2 < 8: PM(i+2)
        M(i)
    A(f"s_cmp_lg_u32 s{sMORE}, 0")
    A(f"s_cbranch_scc1 L_again")
    A.c("---- early waves: publish the max, later the state rescaled to the common max")
    A(f"ds_write_b32 v43, v{vMRUN} offset:{LDS_M}")
    A(f"ds_write_b32 v36, v5 offset:{LDS_N+16}")
    for j in range(4):
        pack(2*j)
    A(f"s_cmp_ge_u32 s{sW}, 3")
    A(f"s_cbranch_scc1 L_eA")
    consumer_addr(A)
    A(f"s_cmp_eq_u32 s{sW}, 2")
    A(f"s_cbranch_scc1 L_eA")
    A.c("waves 0,1: fetch the launch nonce (written by WG 0 at its start) and pass it on through LDS")
    A(f"s_mov_b64 exec, 1")
    A(f"s_mov_b32 s72, 0x100000")
    A.label("L_getnonce")
    A(f"buffer_load_dwordx2 v[92:93], v5, s[{sDBG}:{sDBG+3}], 0 offen offset:192 sc1")
    A(f"s_sub_u32 s72, s72, 1")
    A(f"s_cbranch_scc1 L_gotnonce")
    A("s_waitcnt vmcnt(0)")
    A(f"v_cmp_eq_u32 vcc, 0, v93")
    A(f"s_cbranch_vccnz L_getnonce")
    A.label("L_gotnonce")
    A("s_waitcnt vmcnt(0)")
    A(f"v_readfirstlane_b32 s{sH}, v92")
    A(f"v_readfirstlane_b32 s{sH+1}, v93")
    A(f"ds_write_b64 v5, v[92:93] offset:{LDS_N}")
    A(f"s_mov_b64 exec, -1")
    tagword(A, cB, 124)
    A.label("L_eA")
    A("s_waitcnt lgkmcnt(0)")
    A(f"s_barrier")
    A(f"ds_read_b128 v[{vQ}:{vQ+3}], v1 offset:{LDS_M}")
    A(f"ds_read_b32 v95, v5 offset:{LDS_N+4}")
    A("s_waitcnt lgkmcnt(1)")
    A(f"v_max3_f32 v14, v{vQ}, v{vQ+1}, v{vQ+2}")
    A(f"v_max_f32 v14, v14, v{vQ+3}")
    A(f"v_sub_f32 v14, v{LW+6}, v14")
    A(f"v_exp_f32 v14, v14")
    A.nop(1)
    A(f"v_mul_f32 v{vL}, v{vL}, v14")
    A(f"ds_write_b32 v43, v{vL} offset:{LDS_L}")
    for j in range(4):
        for q in range(4):
            A(f"v_mul_f32 v{vO+8*j+q}, v{vO+8*j+q}, v14")
        A(f"ds_write_b128 v39, v[{vO+8*j}:{vO+8*j+3}] offset:{LDS_XE+1024*j}")
    A(f"v_mov_b32 v94, 1")
    A("s_waitcnt lgkmcnt(0)")
    A(f"s_barrier")
    if dbg == 1:
        A(f"s_branch L_fin")
    A(f"s_cmp_ge_u32 s{sW}, 3")
    A(f"s_cbranch_scc1 L_fin")
    A(f"s_cmp_eq_u32 s{sW}, 2")
    A(f"s_cbranch_scc1 L_w2")
    if dbg == 2:
        A(f"s_branch L_fin")
    consumer(A, "L_c", stamps, sleep, lpol)
    A.label("L_w2")
    A(f"s_mov_b64 exec, 1")
    if stamps: A(f"s_memrealtime s[{sST+4}:{sST+5}]")
    A(f"buffer_atomic_add v94, v{cFL}, s[{sWS}:{sWS+3}], 0 offen sc0 sc1")
    A("s_waitcnt vmcnt(0)")
    if stamps: A(f"s_memrealtime s[{sST+8}:{sST+9}]")
    A(f"v_cmp_eq_u32 vcc, 63, v94")
    A(f"s_cbranch_vccz L_fin")
    A(f"buffer_store_dword v95, v{cFL}, s[{sWS}:{sWS+3}], 0 offen offset:{FLAG_OFF} sc0 sc1")
    A.label("L_c_end")
    A.label("L_fin")
    if stamps:
        A("s_waitcnt vmcnt(0)")
        A(f"s_memrealtime s[{sST+10}:{sST+11}]")
        A("s_waitcnt lgkmcnt(0)")
        A("s_mov_b64 exec, 1")
        for i in range(6):
            A(f"v_mov_b32 v{16+i}, s{sST+2*i}")
        A("s_getreg_b32 s62, hwreg(HW_REG_XCC_ID)")
        A("v_mov_b32 v22, s62")
        A("v_mov_b32 v23, s72")
        A(f"s_lshl_b32 s62, s2, 3")
        A(f"s_add_u32 s62, s62, s{sW}")
        A(f"s_lshl_b32 s62, s62, 5")
        A(f"s_add_u32 s62, s62, {STAMP_BASE}")
        A(f"v_mov_b32 v1, s62")
        A(f"buffer_store_dwordx4 v[16:19], v1, s[{sWS}:{sWS+3}], 0 offen")
        A(f"buffer_store_dwordx4 v[20:23], v1, s[{sWS}:{sWS+3}], 0 offen offset:16")
    A.label("L_end")
    A("s_endpgm")
    A.c("---- WG 0, wave 0: clear the arrival counters, then publish this launch's nonce")
    A.label("L_mknonce")
    A(f"s_mul_i32 s86, s{sH}, 0x9E3779B9")
    A(f"s_mul_i32 s87, s{sH+1}, 0x7F4A7C15")
    A(f"s_add_u32 s86, s86, s87")
    A(f"s_mul_hi_u32 s87, s{sH}, 0x7F4A7C15")
    A(f"s_add_u32 s86, s86, s87")
    A(f"s_mul_i32 s{sH}, s{sH}, 0x7F4A7C15")
    A(f"s_or_b32 s{sH+1}, s86, 0x80000000")
    A(f"v_mov_b32 v92, s{sH}")
    A(f"v_mov_b32 v93, s{sH+1}")
    A(f"v_mov_b32 v94, 0")
    A(f"v_mul_u32_u24 v95, {CNT_STRIDE}, v{vLANE}")
    A(f"v_add_u32 v95, {CNT_BASE}, v95")
    A(f"s_mov_b64 exec, 15")
    A(f"global_store_dword v95, v94, s[22:23] sc0 sc1")
    A(f"s_waitcnt vmcnt(0)")
    A(f"s_mov_b64 exec, 1")
    A(f"global_store_dwordx2 v94, v[92:93], s[20:21] offset:192 sc0 sc1")
    A(f"s_mov_b64 exec, -1")
    A(f"s_branch L_nonced")
    A.c("---- rare paths (second round, long contexts)")
    A.label("L_again")
    for k in range(3):
        A(f"s_load_dword s{sBT+k}, s[{sBTA}:{sBTA+1}], {(5+k)*1024}")
    A(f"s_add_u32 s{sPB}, s{sPB}, 1280")
    A("s_waitcnt vmcnt(0) lgkmcnt(0)")
    A.nop(8)
    A("s_branch L_round")
    A.label("L_rescale")
    A(f"v_sub_f32 v15, v{vMRUN}, v{vMC}")
    A(f"v_exp_f32 v15, v15")
    A.nop(1)
    for i in range(36):
        A(f"v_mul_f32 v{vO+i}, v{vO+i}, v15")
    A("s_branch L_rescaled")


def kd(name, vgpr, sgpr=102):
    return f""".amdhsa_kernel {name}
  .amdhsa_next_free_vgpr {vgpr}
  .amdhsa_next_free_sgpr {sgpr}
  .amdhsa_accum_offset {vgpr}
  .amdhsa_group_segment_fixed_size 0
  .amdhsa_kernarg_size 64
  .amdhsa_user_sgpr_count 2
  .amdhsa_user_sgpr_kernarg_segment_ptr 1
  .amdhsa_system_sgpr_workgroup_id_x 1
.end_amdhsa_kernel
"""


OPOL = ['']
def gen(opol='', **kw):
    OPOL[0] = opol
    A = G()
    k1 = NAME + "_kernel"
    out = HEADER
    out += f"; @launch grid=(256,1,1) block=(512,1,1) lds={LDS_TOTAL}\n"
    out += '.amdgcn_target "amdgcn-amd-amdhsa--gfx950"\n.text\n'
    main_kernel(A, k1, **kw)
    out += "\n".join(A.L) + "\n"
    out += f".fill (8192 - (. - {k1})) / 4, 4, 0xbf810000\n"
    out += '.section .rodata,"a"\n.p2align 6\n' + kd(k1, 256)
    return out


if __name__ == "__main__":
    kw = eval("dict(" + (sys.argv[2] if len(sys.argv) > 2 else "") + ")")
    open(sys.argv[1], "w").write(gen(**kw))
```

```python
import sys, struct

NAME = "standalone__paged_block_table_kv_pagedattention__decode"
KV_BYTES = 4100 * 16384
WS_BYTES = 268697600
GS = 512 << 10
LSE_BASE = 2 << 20
CNT_BASE = (2 << 20) + (128 << 10)
CNT_STRIDE = 4096 + 256
FLAG_OFF = 2048
STAMP_BASE = 4 << 20
NEG = 0xF149F2CA
SCALE = struct.unpack("<I", struct.pack("<f", 1.4426950408889634 / (128 ** 0.5)))[0]
HEADER = open("cdna_kernels/" + NAME + ".s.ref").read().split("; Override launch geometry")[0]
LDS_N = 0
LDS_M = 64
LDS_L = LDS_M + 512
LDS_X = 2048
LDS_XE = LDS_X + 8192
LDS_TOTAL = LDS_XE + 16384


class G:
    def __init__(self):
        self.L = []
    def __call__(self, s):
        self.L.append("  " + s)
    def label(self, s):
        self.L.append(s + ":")
    def c(self, s):
        self.L.append("  ; " + s)
    def nop(self, n):
        while n > 0:
            k = min(n, 16)
            self(f"s_nop {k-1}")
            n -= k


def srd(A, d, lo, nbytes):
    A(f"s_mov_b32 s{d}, s{lo}")
    A(f"s_mov_b32 s{d+1}, s{lo+1}")
    A(f"s_mov_b32 s{d+2}, {nbytes}")
    A(f"s_mov_b32 s{d+3}, 0x20000")


DPPM = "row_mask:0xf bank_mask:0xf"
vLANE, vR, vG = 2, 3, 4
vKOFF, vVOFF, vADDR = 6, 7, 8
vT0, vT1, vNEG, vMRUN, vMC = 9, 10, 11, 12, 13
vQ = 16
vC = 24
vPA, vPB, vPC = 40, 44, 48
vONE = 52
vO = 56
vL = 88
vK = 96
vV = 176
sW, sPR, sB, sSI, sWI = 3, 4, 5, 6, 7
sK, sV, sWS, sQ, sOUT, sDBG = 24, 28, 32, 36, 40, 44
sBT = 48
sLL = 53
sBTA = 54
sEFF, s8K, sSC, sSELLO, sSELHI = 56, 57, 58, 59, 60
sPB = 61
sOFF, sNV = 66, 71
sMORE = 76
sKVH = 77
sH = 84
sST = 90
cA, cB, cOUT, cFL, cLS, cG, cACC = 96, 97, 98, 99, 100, 104, 120


def tagword(A, dst, tmp):
    A(f"v_and_b32 v{tmp}, 2, v{vLANE}")
    A(f"v_cmp_eq_u32 vcc, 0, v{tmp}")
    A(f"v_mov_b32 v{dst}, s{sH}")
    A(f"v_mov_b32 v{tmp}, s{sH+1}")
    A(f"v_cndmask_b32 v{dst}, v{tmp}, v{dst}, vcc")
    A(f"v_and_b32 v{tmp}, 1, v{vLANE}")
    A(f"v_lshlrev_b32 v{tmp}, 2, v{tmp}")
    A(f"v_lshrrev_b32 v{dst}, v{tmp}, v{dst}")
    A(f"v_and_b32 v{dst}, 0x0f0f0f0f, v{dst}")


def consumer_addr(A):
    A.c("final-combine addresses: line si of the group, half = wave")
    A(f"s_and_b32 s62, s2, 3")
    A(f"s_mul_i32 s63, s62, {CNT_STRIDE}")
    A(f"s_add_u32 s63, s63, {CNT_BASE}")
    A(f"v_mov_b32 v{cFL}, s63")
    A(f"s_mul_i32 s63, s62, {GS}")
    A(f"s_lshl_b32 s64, s{sSI}, 7")
    A(f"s_add_u32 s63, s63, s64")
    A(f"s_lshl_b32 s64, s{sW}, 6")
    A(f"s_add_u32 s63, s63, s64")
    A(f"v_lshrrev_b32 v124, 2, v{vLANE}")
    A(f"v_and_b32 v125, 3, v{vLANE}")
    A(f"v_lshlrev_b32 v{cA}, 13, v124")
    A(f"v_lshl_add_u32 v{cA}, v125, 4, v{cA}")
    A(f"v_add_u32 v{cA}, s63, v{cA}")
    A(f"s_mov_b32 s8, 0x20000")
    A(f"s_mov_b32 s9, 0x40000")
    A(f"s_mov_b32 s10, 0x60000")
    A(f"s_mov_b32 s11, 0x05010400")
    A(f"s_lshr_b32 s64, s{sSI}, 5")
    A(f"s_lshl_b32 s67, s{sPR}, 1")
    A(f"s_add_u32 s67, s67, s64")
    A(f"s_lshl_b32 s67, s67, 3")
    A(f"s_lshl_b32 s66, s{sW}, 2")
    A(f"s_add_u32 s67, s67, s66")
    A(f"s_lshr_b32 s66, s2, 1")
    A(f"s_xor_b32 s66, s66, s64")
    A(f"s_and_b32 s66, s66, 1")
    A(f"s_lshl_b32 s66, s66, 5")
    A(f"s_add_u32 s67, s67, s66")
    A(f"s_lshl_b32 s67, s67, 7")
    A(f"s_bfe_u32 s66, s{sSI}, 0x20001")
    A(f"s_lshl_b32 s66, s66, 5")
    A(f"s_add_u32 s67, s67, s66")
    A(f"s_bfe_u32 s66, s{sSI}, 0x20003")
    A(f"s_lshl_b32 s66, s66, 1")
    A(f"s_add_u32 s67, s67, s66")
    A(f"s_and_b32 s66, s{sSI}, 1")
    A(f"s_add_u32 s67, s67, s66")
    A(f"v_lshlrev_b32 v{cOUT}, 7, v125")
    A(f"v_lshrrev_b32 v124, 4, v{vLANE}")
    A(f"v_lshl_add_u32 v{cOUT}, v124, 3, v{cOUT}")
    A(f"v_add_u32 v{cOUT}, s67, v{cOUT}")
    A(f"v_lshlrev_b32 v{cOUT}, 1, v{cOUT}")


def consumer(A, lab, stamps, sleep, lpol):
    so = ["0", "s8", "s9", "s10"]
    t0, t1, t2, t3 = 124, 125, 126, 127
    pG = [64, 66, 68, 70]
    def P(x): return f"s[{x}:{x+1}]"
    def ld_g(j):
        r = cG + 4*j
        A(f"buffer_load_dwordx4 v[{r}:{r+3}], v{cA}, s[{sWS}:{sWS+3}], {so[j]} offen {lpol}")
    def chk_g(j):
        r = cG + 4*j
        A(f"v_perm_b32 v{t0}, v{r+1}, v{r}, s11")
        A(f"v_perm_b32 v{t1}, v{r+3}, v{r+2}, s11")
        A(f"v_perm_b32 v{t2}, v{t1}, v{t0}, s{sSELHI}")
        A(f"v_perm_b32 v{cLS+j}, v{t1}, v{t0}, s{sSELLO}")
        A(f"v_and_b32 v{t2}, 0x0f0f0f0f, v{t2}")
        A(f"v_cmp_ne_u32_e64 {P(pG[j])}, v{t2}, v{cB}")
        if j < 2:
            for q in range(4):
                A(f"v_and_b32 v{r+q}, s80, v{r+q}")
    A(f"s_mov_b32 s72, 0x100000")
    A.c("wait for the group's go flag (a hint only: the tags decide)")
    A(f"s_mov_b64 exec, 1")
    A.label(f"{lab}_flag")
    A(f"buffer_load_dword v{t0}, v{cFL}, s[{sWS}:{sWS+3}], 0 offen offset:{FLAG_OFF} sc1")
    A(f"s_sub_u32 s72, s72, 1")
    A(f"s_cbranch_scc1 {lab}_end")
    A("s_waitcnt vmcnt(0)")
    A(f"v_cmp_eq_u32 vcc, s{sH+1}, v{t0}")
    if sleep:
        A(f"s_cbranch_vccnz {lab}_go")
        A(f"s_sleep {sleep}")
        A(f"s_branch {lab}_flag")
    else:
        A(f"s_cbranch_vccz {lab}_flag")
    A.label(f"{lab}_go")
    if stamps:
        A(f"s_memrealtime s[{sST+4}:{sST+5}]")
        A(f"s_mov_b32 s72, 0x100000")
    A(f"s_mov_b64 exec, -1")
    for j in range(4): ld_g(j)
    for j in range(4):
        A(f"s_waitcnt vmcnt({3-j})")
        chk_g(j)
    A.label(f"{lab}_test")
    A(f"s_or_b64 s[74:75], {P(pG[0])}, {P(pG[1])}")
    A(f"s_or_b64 s[62:63], {P(pG[2])}, {P(pG[3])}")
    A(f"s_or_b64 s[74:75], s[74:75], s[62:63]")
    A(f"s_cbranch_scc1 {lab}_retry")
    A(f"s_mov_b64 exec, -1")
    if stamps:
        A(f"s_memrealtime s[{sST+8}:{sST+9}]")
    L = cLS
    def clean(lo, hi):
        for x in range(lo, hi):
            A(f"v_and_b32 v{cG+x}, s80, v{cG+x}")
    A(f"v_max3_f32 v{t0}, v{L}, v{L+1}, v{L+2}")
    A(f"v_max_f32 v{t0}, v{t0}, v{L+3}")
    clean(8, 10)
    A(f"v_max_f32_dpp v{t0}, v{t0}, v{t0} row_ror:4 {DPPM}")
    clean(10, 12)
    A(f"v_max_f32_dpp v{t0}, v{t0}, v{t0} row_ror:8 {DPPM}")
    A(f"v_mov_b32 v{t1}, v{t0}")
    clean(12, 14)
    A(f"v_permlane16_swap_b32 v{t0}, v{t1}")
    A(f"v_max_f32 v{t0}, v{t0}, v{t1}")
    A(f"v_mov_b32 v{t1}, v{t0}")
    clean(14, 16)
    A(f"v_permlane32_swap_b32 v{t0}, v{t1}")
    A(f"v_max_f32 v{t0}, v{t0}, v{t1}")
    for j in range(4):
        A(f"v_sub_f32 v{L+j}, v{L+j}, v{t0}")
    for j in range(4):
        A(f"v_exp_f32 v{L+j}, v{L+j}")
    acc = cACC
    def wsum(j):
        op = "v_mul_f32" if j == 0 else "v_fmac_f32"
        for q in range(4):
            A(f"{op} v{acc+q}, v{L+j}, v{cG+4*j+q}")
    wsum(0)
    A(f"v_add_f32 v{t1}, v{L}, v{L+1}")
    A(f"v_add_f32 v{t2}, v{L+2}, v{L+3}")
    A(f"v_add_f32 v{t1}, v{t1}, v{t2}")
    wsum(1)
    A(f"v_add_f32_dpp v{t1}, v{t1}, v{t1} row_ror:4 {DPPM}")
    wsum(2)
    A(f"v_add_f32_dpp v{t1}, v{t1}, v{t1} row_ror:8 {DPPM}")
    wsum(3)
    A(f"v_mov_b32 v{t2}, v{t1}")
    A(f"v_permlane16_swap_b32 v{acc}, v{acc+1}")
    A(f"v_permlane16_swap_b32 v{acc+2}, v{acc+3}")
    A(f"v_permlane16_swap_b32 v{t1}, v{t2}")
    A(f"v_add_f32 v{acc}, v{acc}, v{acc+1}")
    A(f"v_add_f32 v{acc+2}, v{acc+2}, v{acc+3}")
    A(f"v_add_f32 v{t1}, v{t1}, v{t2}")
    A(f"v_mov_b32 v{t2}, v{t1}")
    A(f"v_permlane32_swap_b32 v{acc}, v{acc+2}")
    A.nop(1)
    A(f"v_permlane32_swap_b32 v{t1}, v{t2}")
    A(f"v_add_f32 v{acc}, v{acc}, v{acc+2}")
    A(f"v_add_f32 v{t1}, v{t1}, v{t2}")
    A(f"v_rcp_f32 v{t1}, v{t1}")
    A(f"v_add_f32_dpp v{acc}, v{acc}, v{acc} row_ror:4 {DPPM}")
    A(f"s_mov_b32 s62, 0x000f000f")
    A(f"s_mov_b32 s63, 0x000f000f")
    A(f"v_add_f32_dpp v{acc}, v{acc}, v{acc} row_ror:8 {DPPM}")
    A(f"v_mul_f32 v{acc}, v{acc}, v{t1}")
    A(f"v_cvt_pk_bf16_f32 v{acc}, v{acc}, v{acc}")
    A(f"s_mov_b64 exec, s[62:63]")
    A(f"buffer_store_short v{acc}, v{cOUT}, s[{sOUT}:{sOUT+3}], 0 offen {OPOL[0]}")
    if stamps: A(f"s_branch {lab}_end")
    else: A("s_endpgm")
    A.label(f"{lab}_retry")
    A(f"s_sub_u32 s72, s72, 1")
    A(f"s_cbranch_scc1 {lab}_end")
    A.c("a 4-lane group (64 B of one producer) is accepted or re-read as a whole")
    A(f"s_mov_b32 s62, 0x11111111")
    A(f"s_mov_b32 s63, 0x11111111")
    for j in range(4):
        A(f"s_lshr_b64 s[74:75], {P(pG[j])}, 2")
        A(f"s_or_b64 {P(pG[j])}, {P(pG[j])}, s[74:75]")
        A(f"s_lshr_b64 s[74:75], {P(pG[j])}, 1")
        A(f"s_or_b64 {P(pG[j])}, {P(pG[j])}, s[74:75]")
        A(f"s_and_b64 {P(pG[j])}, {P(pG[j])}, s[62:63]")
        A(f"s_mul_i32 s{pG[j]}, s{pG[j]}, 15")
        A(f"s_mul_i32 s{pG[j]+1}, s{pG[j]+1}, 15")
        A(f"s_mov_b64 exec, {P(pG[j])}")
        A(f"s_cbranch_execz {lab}_s{j+1}")
        ld_g(j)
        A.label(f"{lab}_s{j+1}")
    A("s_waitcnt vmcnt(0)")
    for j in range(4):
        A(f"s_mov_b64 exec, {P(pG[j])}")
        chk_g(j)
    A(f"s_branch {lab}_test")


def main_kernel(A, name, pol="nt", stamps=False, sleep=2, spol="sc0 sc1", lpol="sc1", b1pos=3, v4pos=(0, 1, 2, 3), dbg=0, half=0, sched=0, prio=0):
    A.L.append(f".globl {name}")
    A.L.append(".p2align 8")
    A.L.append(f".type {name},@function")
    A.label(name)
    A("s_load_dwordx16 s[8:23], s[0:1], 0")
    A("s_cmp_ge_u32 s2, 256")
    A("s_cbranch_scc1 L_end")
    A.c("pull this kernel's code into L2 (one 1 KiB piece per wave)")
    A("s_getpc_b64 s[62:63]")
    A.label("L_pc")
    A("v_lshlrev_b32 v1, 4, v0")
    A(f"s_sub_u32 s62, s62, L_pc-{name}")
    A(f"s_subb_u32 s63, s63, 0")
    A(f"global_load_dwordx4 v[{vC}:{vC+3}], v1, s[62:63]")
    if stamps:
        A(f"s_memrealtime s[{sST}:{sST+1}]")
    A(f"s_memrealtime s[{sH}:{sH+1}]")
    A("v_lshrrev_b32 v1, 6, v0")
    A(f"v_and_b32 v{vLANE}, 63, v0")
    A(f"v_readfirstlane_b32 s{sW}, v1")
    A(f"v_and_b32 v{vR}, 15, v0")
    A(f"v_lshrrev_b32 v{vG}, 4, v{vLANE}")
    A(f"s_and_b32 s{sPR}, s2, 1")
    A(f"s_lshr_b32 s{sB}, s2, 1")
    A(f"s_xor_b32 s{sB}, s{sB}, s{sW}")
    A(f"s_and_b32 s{sB}, s{sB}, 1")
    A(f"s_lshr_b32 s{sSI}, s2, 2")
    A(f"s_lshr_b32 s{sWI}, s{sW}, 1")
    A(f"s_lshl_b32 s{sWI}, s{sWI}, 6")
    A(f"s_mul_i32 s62, s{sB}, 63")
    A(f"s_xor_b32 s62, s62, s{sSI}")
    A(f"s_add_u32 s{sWI}, s{sWI}, s62")
    A(f"s_lshl_b32 s62, s{sB}, 11")
    A(f"s_add_u32 s62, s62, s{sWI}")
    A(f"s_lshl_b32 s64, s62, 2")
    A(f"s_lshl_b32 s65, s{sB}, 2")
    A("s_waitcnt lgkmcnt(0)")
    A(f"s_add_u32 s{sBTA}, s14, s64")
    A(f"s_addc_u32 s{sBTA+1}, s15, 0")
    A(f"s_load_dword s{sEFF}, s[16:17], s65")
    for k in (4, 0, 1, 2, 3):
        A(f"s_load_dword s{sBT+k}, s[{sBTA}:{sBTA+1}], {k*1024}")
    A(f"s_or_b32 s62, s2, s{sW}")
    A(f"s_cbranch_scc0 L_mknonce")
    A.label("L_nonced")
    if prio:
        A(f"s_cmp_lt_u32 s{sW}, 4")
        A(f"s_cbranch_scc{1 if prio == 1 else 0} L_noprio")
        A(f"s_setprio 1")
        A.label("L_noprio")
    A(f"s_and_b32 s{sKVH}, s{sW}, 1")
    A(f"s_lshl_b32 s62, s{sPR}, 1")
    A(f"s_add_u32 s{sKVH}, s{sKVH}, s62")
    A(f"v_lshrrev_b32 v5, 1, v{vR}")
    A(f"v_lshlrev_b32 v{vKOFF}, 10, v5")
    A(f"v_lshl_add_u32 v{vKOFF}, v{vG}, 5, v{vKOFF}")
    A(f"v_and_b32 v5, 1, v{vR}")
    A(f"v_lshl_add_u32 v{vKOFF}, v5, 4, v{vKOFF}")
    A(f"s_lshl_b32 s66, s{sKVH}, 8")
    A(f"v_add_u32 v{vKOFF}, s66, v{vKOFF}")
    A(f"v_lshlrev_b32 v{vVOFF}, 11, v{vG}")
    A(f"v_lshl_add_u32 v{vVOFF}, v{vR}, 4, v{vVOFF}")
    A(f"v_add_u32 v{vVOFF}, s66, v{vVOFF}")
    A(f"v_and_b32 v5, 7, v{vR}")
    A(f"v_lshlrev_b32 v14, 8, v5")
    A(f"v_lshl_add_u32 v14, v{vG}, 5, v14")
    A(f"v_lshrrev_b32 v5, 3, v{vR}")
    A(f"v_lshl_add_u32 v14, v5, 4, v14")
    A(f"s_lshl_b32 s67, s{sB}, 13")
    A(f"s_lshl_b32 s68, s{sKVH}, 11")
    A(f"s_add_u32 s67, s67, s68")
    srd(A, sK, 10, KV_BYTES)
    srd(A, sQ, 8, 16384)
    A(f"s_movk_i32 s{s8K}, 0x2000")
    A(f"s_mov_b32 s{sPB}, s{sWI}")
    A("s_waitcnt lgkmcnt(0)")
    if stamps:
        A(f"s_memrealtime s[{sST+2}:{sST+3}]")
    A.c("eff = cl<=0 ? 32768 : min(cl, 32768);  cl<=0: Q reads as zero (uniform softmax over all keys)")
    A(f"s_cmp_le_i32 s{sEFF}, 0")
    A(f"s_cselect_b32 s67, 0x80000000, s67")
    A(f"s_cselect_b32 s{sEFF}, 0x8000, s{sEFF}")
    A(f"s_min_i32 s{sEFF}, s{sEFF}, 0x8000")
    A(f"v_add_u32 v14, s67, v14")
    A(f"buffer_load_dwordx4 v[{vQ}:{vQ+3}], v14, s[{sQ}:{sQ+3}], 0 offen")
    A(f"buffer_load_dwordx4 v[{vQ+4}:{vQ+7}], v14, s[{sQ}:{sQ+3}], 0 offen offset:128")
    A.label("L_round")
    ks = [4, 0, 1, 2, 3]
    A(f"s_lshl_b32 s62, s{sPB}, 4")
    A(f"s_sub_i32 s62, s{sEFF}, s62")

    def slot_setup(s):
        k = ks[s]
        A(f"s_sub_i32 s{sNV+s}, s62, {k*4096}")
        A(f"s_lshl_b32 s{sOFF+s}, s{sBT+k}, 14")
        A(f"s_cmp_gt_i32 s{sNV+s}, 0")
        A(f"s_cselect_b32 s{sOFF+s}, s{sOFF+s}, 0x80000000")

    def kload(s):
        A(f"v_add_u32 v{vADDR}, s{sOFF+s}, v{vKOFF}")
        for n, (so, o) in enumerate([("0", 0), ("0", 128), (f"s{s8K}", 0), (f"s{s8K}", 128)]):
            r = vK + 16*s + 4*n
            A(f"buffer_load_dwordx4 v[{r}:{r+3}], v{vADDR}, s[{sK}:{sK+3}], {so} offen offset:{o} {pol}")

    def vload(s):
        A(f"v_add_u32 v{vADDR}, s{sOFF+s}, v{vVOFF}")
        for n, (so, o) in enumerate([("0", 0), ("0", 1024), (f"s{s8K}", 0), (f"s{s8K}", 1024)]):
            r = vV + 16*s + 4*n
            A(f"buffer_load_dwordx4 v[{r}:{r+3}], v{vADDR}, s[{sV}:{sV+3}], {so} offen offset:{o} {pol}")

    def qk_mfma(s):
        c = vC + 8*(s & 1)
        k = vK + 16*s
        A(f"v_mfma_f32_16x16x32_bf16 v[{c}:{c+3}], v[{k}:{k+3}], v[{vQ}:{vQ+3}], 0")
        A(f"v_mfma_f32_16x16x32_bf16 v[{c+4}:{c+7}], v[{k+8}:{k+11}], v[{vQ}:{vQ+3}], 0")
        A(f"v_mfma_f32_16x16x32_bf16 v[{c}:{c+3}], v[{k+4}:{k+7}], v[{vQ+4}:{vQ+7}], v[{c}:{c+3}]")
        A(f"v_mfma_f32_16x16x32_bf16 v[{c+4}:{c+7}], v[{k+12}:{k+15}], v[{vQ+4}:{vQ+7}], v[{c+4}:{c+7}]")

    def qk_post(s):
        c = vC + 8*(s & 1)
        x = vK + 16*s
        A(f"s_sub_i32 s63, s{sNV+s}, 8")
        A(f"v_cmp_gt_i32_e64 s[80:81], s{sNV+s}, v{vT0}")
        A(f"v_cmp_gt_i32_e64 s[82:83], s{sNV+s}, v{vT1}")
        A(f"v_add_f32_dpp v{x}, v{c+1}, v{c} row_ror:8 {DPPM}")
        A(f"v_add_f32_dpp v{x+1}, v{c+3}, v{c+2} row_ror:8 {DPPM}")
        A(f"v_add_f32_dpp v{x+2}, v{c+5}, v{c+4} row_ror:8 {DPPM}")
        A(f"v_add_f32_dpp v{x+3}, v{c+7}, v{c+6} row_ror:8 {DPPM}")
        A(f"v_mul_f32 v{x}, s{sSC}, v{x}")
        A(f"v_mul_f32 v{x+1}, s{sSC}, v{x+1}")
        A(f"v_cndmask_b32_e64 v{x}, v{vNEG}, v{x}, s[80:81]")
        A(f"v_cndmask_b32_e64 v{x+1}, v{vNEG}, v{x+1}, s[82:83]")
        A(f"v_cmp_gt_i32_e64 s[80:81], s63, v{vT0}")
        A(f"v_cmp_gt_i32_e64 s[82:83], s63, v{vT1}")
        A(f"v_mul_f32 v{x+2}, s{sSC}, v{x+2}")
        A(f"v_mul_f32 v{x+3}, s{sSC}, v{x+3}")
        A(f"v_cndmask_b32_e64 v{x+2}, v{vNEG}, v{x+2}, s[80:81]")
        A(f"v_cndmask_b32_e64 v{x+3}, v{vNEG}, v{x+3}, s[82:83]")
        if s == 0:
            A(f"v_max3_f32 v14, v{x}, v{x+1}, v{x+2}")
            A(f"v_max_f32 v14, v14, v{x+3}")
        else:
            A(f"v_max3_f32 v14, v14, v{x}, v{x+1}")
            A(f"v_max3_f32 v14, v14, v{x+2}, v{x+3}")

    issued = [0]
    def W(idx):
        A(f"s_waitcnt vmcnt({issued[0] - 1 - idx})")
    def KL(s):
        kload(s); issued[0] += 4
    def VL(s):
        vload(s); issued[0] += 4

    for s in range(5):
        slot_setup(s)
        KL(s)
    A.c("round flags: MORE = another round follows; LL = late wave in its last round")
    A(f"s_cmp_gt_i32 s62, {5*4096}")
    A(f"s_cselect_b32 s{sMORE}, 1, 0")
    A(f"s_cselect_b32 s63, 0, s{sW}")
    A(f"s_cmp_ge_u32 s63, 4")
    A(f"s_cselect_b32 s{sLL}, 1, 0")
    srd(A, sV, 12, KV_BYTES)
    srd(A, sWS, 22, WS_BYTES)
    srd(A, sOUT, 18, 16384)
    srd(A, sDBG, 20, 256)
    A(f"s_mov_b32 s{sSC}, {SCALE:#x}")
    A(f"s_mov_b32 s{sSELLO}, 0x05040100")
    A(f"s_mov_b32 s{sSELHI}, 0x07060302")
    A(f"v_lshlrev_b32 v{vT0}, 1, v{vG}")
    A(f"v_or_b32 v{vT1}, 1, v{vT0}")
    A(f"v_mov_b32 v{vNEG}, {NEG:#x}")
    A(f"v_mov_b32 v{vONE}, 0x3f803f80")
    for i in range(1, 4):
        A(f"v_mov_b32 v{vONE+i}, v{vONE}")
    A(f"s_and_b32 s64, s{sW}, 1")
    A(f"s_lshl_b32 s64, s64, 8")
    A(f"v_lshlrev_b32 v42, 4, v{vR}")
    A(f"v_add_u32 v42, s64, v42")
    A(f"s_lshr_b32 s64, s{sW}, 1")
    A(f"s_lshl_b32 s64, s64, 2")
    A(f"v_add_u32 v43, s64, v42")
    A(f"v_and_b32 v1, 0x17f, v42")
    A(f"v_mov_b32 v5, 0")
    A(f"s_cmp_lg_u32 s{sPB}, s{sWI}")
    A(f"s_cbranch_scc1 L_noinit")
    A(f"v_mov_b32 v{vMRUN}, v{vNEG}")
    for i in range(36):
        A(f"v_mov_b32 v{vO+i}, 0")
    A.label("L_noinit")
    if sched == 0:
        W(3); qk_mfma(0)
        VL(0)
        W(7); qk_mfma(1); qk_post(0)
        W(11); qk_mfma(2); qk_post(1)
        VL(1)
        W(15); qk_mfma(3); qk_post(2)
        VL(2)
        W(19); qk_mfma(4); qk_post(3)
        VL(3)
        qk_post(4)
    elif sched == 1:
        VL(0)
        W(3); qk_mfma(0)
        W(7); qk_mfma(1); A.nop(4); qk_post(0)
        VL(1)
        W(11); qk_mfma(2); qk_post(1)
        VL(2)
        W(15); qk_mfma(3); qk_post(2)
        VL(3)
        W(19); qk_mfma(4); qk_post(3)
        qk_post(4)
    elif sched == 2:
        W(3); qk_mfma(0)
        W(7); qk_mfma(1); A.nop(4); qk_post(0)
        W(11); qk_mfma(2); qk_post(1)
        VL(0)
        W(15); qk_mfma(3); qk_post(2)
        VL(1)
        W(19); qk_mfma(4); qk_post(3)
        VL(2)
        qk_post(4)
        VL(3)
    if v4pos is None:
        VL(4)
        v4pos = (9, 9, 9, 9)
    A(f"v_mov_b32 v15, v14")
    A.nop(2)
    A(f"v_permlane16_swap_b32 v14, v15")
    A(f"v_max_f32 v14, v14, v15")
    A(f"v_mov_b32 v15, v14")
    A.nop(2)
    A(f"v_permlane32_swap_b32 v14, v15")
    A(f"v_max3_f32 v{vMC}, v14, v15, v{vMRUN}")
    EM = vK + 4
    A(f"s_cmp_eq_u32 s{sLL}, 0")
    A(f"s_cbranch_scc1 L_ownmax")
    A.c("late wave, last round: common max of the head's four waves")
    A(f"ds_write_b32 v43, v{vMC} offset:{LDS_M}")
    A("s_waitcnt lgkmcnt(0)")
    A("s_barrier")
    A(f"ds_read_b128 v[{EM}:{EM+3}], v42 offset:{LDS_M}")
    A(f"ds_read_b64 v[92:93], v5 offset:{LDS_N}")
    A("s_waitcnt lgkmcnt(1)")
    A(f"v_max3_f32 v{vMC}, v{EM}, v{EM+1}, v{EM+2}")
    A(f"v_max_f32 v{vMC}, v{vMC}, v{EM+3}")
    A("s_waitcnt lgkmcnt(0)")
    A(f"v_readfirstlane_b32 s{sH}, v92")
    A(f"v_readfirstlane_b32 s{sH+1}, v93")
    A.label("L_ownmax")
    A(f"s_cmp_lg_u32 s{sPB}, s{sWI}")
    A(f"s_cbranch_scc1 L_rescale")
    A.label("L_rescaled")
    A(f"v_mov_b32 v{vMRUN}, v{vMC}")
    A(f"v_add_u32 v{vADDR}, s{sOFF+4}, v{vVOFF}")
    v4 = [("0", 0), ("0", 1024), (f"s{s8K}", 0), (f"s{s8K}", 1024)]
    pdst = {0: vPA, 1: vPB, 2: vPB+2, 3: vPC, 4: vPC+2}
    for s in range(5):
        x = vK + 16*s
        for n in range(4):
            if v4pos[n] == s:
                r = vV + 64 + 4*n
                A(f"buffer_load_dwordx4 v[{r}:{r+3}], v{vADDR}, s[{sV}:{sV+3}], {v4[n][0]} offen offset:{v4[n][1]} {pol}")
                issued[0] += 1
        for q in range(4):
            A(f"v_sub_f32 v{x+q}, v{x+q}, v{vMC}")
        for q in range(4):
            A(f"v_exp_f32 v{x+q}, v{x+q}")
        if s > 0:
            xp = vK + 16*(s-1)
            A(f"v_cvt_pk_bf16_f32 v{pdst[s-1]}, v{xp}, v{xp+1}")
            A(f"v_cvt_pk_bf16_f32 v{pdst[s-1]+1}, v{xp+2}, v{xp+3}")
    A(f"v_mfma_f32_16x16x16_bf16 v[{vL}:{vL+3}], v[{vONE}:{vONE+1}], v[{vPA}:{vPA+1}], v[{vL}:{vL+3}]")
    xp = vK + 64
    A(f"v_cvt_pk_bf16_f32 v{pdst[4]}, v{xp}, v{xp+1}")
    A(f"v_cvt_pk_bf16_f32 v{pdst[4]+1}, v{xp+2}, v{xp+3}")
    def addr_block():
        A(f"v_lshlrev_b32 v33, 4, v{vLANE}")
        A(f"s_and_b32 s62, s{sW}, 3")
        A(f"s_lshl_b32 s63, s62, 11")
        A(f"v_add_u32 v37, s63, v33")
        A(f"v_xor_b32 v32, 0x1000, v37")
        A(f"s_lshl_b32 s63, s62, 12")
        A(f"v_add_u32 v39, s63, v33")
        A(f"s_lshl_b32 s62, s62, 2")
        A(f"v_mov_b32 v36, s62")
        A(f"v_xor_b32 v15, 8, v36")
        A(f"s_and_b32 s62, s{sW}, 1")
        A(f"s_bfe_u32 s64, s{sW}, 0x10001")
        A(f"s_lshl_b32 s63, s62, 12")
        A(f"s_lshl_b32 s65, s64, 11")
        A(f"s_add_u32 s63, s63, s65")
        A(f"v_add_u32 v38, s63, v33")
        A(f"s_and_b32 s65, s2, 3")
        A(f"s_mul_i32 s65, s65, {GS}")
        A(f"s_lshl_b32 s66, s{sSI}, 13")
        A(f"s_add_u32 s65, s65, s66")
        A(f"v_add_u32 v34, s65, v38")
        A(f"s_movk_i32 s80, 0xf000")
    addr_block()
    A(f"v_mfma_f32_16x16x32_bf16 v[{vL}:{vL+3}], v[{vONE}:{vONE+3}], v[{vPB}:{vPB+3}], v[{vL}:{vL+3}]")
    A(f"v_mfma_f32_16x16x32_bf16 v[{vL}:{vL+3}], v[{vONE}:{vONE+3}], v[{vPC}:{vPC+3}], v[{vL}:{vL+3}]")

    def perms(s, dst, stride, sub, irange=range(8)):
        v = vV + 16*s
        for i in irange:
            sel = sSELLO if (i & 1) == 0 else sSELHI
            for u in range(2):
                r0 = v + 8*u + (i >> 1)
                r1 = v + 8*u + 4 + (i >> 1)
                A(f"v_perm_b32 v{dst + stride*i + sub + u}, v{r1}, v{r0}, s{sel}")

    ES = vV
    LW = vC
    def B1(pos):
        if pos == b1pos:
            A(f"s_cmp_eq_u32 s{sLL}, 0")
            A(f"s_cbranch_scc1 L_nob1")
            A("s_waitcnt lgkmcnt(0)")
            A(f"s_barrier")
            A(f"ds_read_b128 v[92:95], v1 offset:{LDS_L}")
            A(f"ds_read_b128 v[{ES}:{ES+3}], v38 offset:{LDS_XE}")
            A(f"ds_read_b128 v[{ES+4}:{ES+7}], v38 offset:{LDS_XE+1024}")
            A(f"ds_read_b128 v[{ES+8}:{ES+11}], v38 offset:{LDS_XE+8192}")
            A(f"ds_read_b128 v[{ES+12}:{ES+15}], v38 offset:{LDS_XE+8192+1024}")
            A.label("L_nob1")

    def pack(i0):
        for q in range(4):
            A(f"v_mov_b32_dpp v{vO+4*i0+q}, v{vO+4*i0+4+q} row_ror:8 row_mask:0xf bank_mask:0xc")

    tA, tB, tC = vK, vK + 16, vK + 48
    W(23)
    perms(0, tA, 2, 0)
    A(f"s_cmp_eq_u32 s{sLL}, 0")
    A(f"s_cbranch_scc1 L_nolw")
    A(f"ds_write_b32 v43, v{vL} offset:{LDS_L}")
    A.label("L_nolw")
    for i in range(8):
        o = vO + 4*i
        A(f"v_mfma_f32_16x16x16_bf16 v[{o}:{o+3}], v[{tA+2*i}:{tA+2*i+1}], v[{vPA}:{vPA+1}], v[{o}:{o+3}]")
    tagword(A, LW+5, LW+7)
    A(f"v_mov_b32 v{LW+6}, v{vMRUN}")
    A(f"v_mov_b32_dpp v{LW+6}, v{vMRUN} row_ror:8 row_mask:0xf bank_mask:0xc")
    W(27)
    B1(1)
    perms(1, tB, 4, 0)
    W(31)
    B1(2)
    perms(2, tB, 4, 2)
    for i in range(8):
        o = vO + 4*i
        A(f"v_mfma_f32_16x16x32_bf16 v[{o}:{o+3}], v[{tB+4*i}:{tB+4*i+3}], v[{vPB}:{vPB+3}], v[{o}:{o+3}]")
    W(35)
    B1(3)
    perms(3, tC, 4, 0)
    A(f"s_cmp_eq_u32 s{sLL}, 0")
    A(f"s_cbranch_scc1 L_tail_other")
    A.c("---- late wave, last round")
    assert b1pos in (1, 2, 3)
    for q in range(4):
        A(f"s_mov_b32 s{86+q}, {0x0c0c0000 | ((4+q) << 8) | q:#x}")
    A("s_waitcnt lgkmcnt(4)")
    A(f"v_add_f32 v92, v92, v93")
    A(f"v_add_f32 v94, v94, v95")
    A(f"v_add_f32 v92, v92, v94")
    A(f"v_rcp_f32 v{LW+4}, v92")
    A(f"v_log_f32 v{LW+7}, v92")
    A(f"v_mov_b32 v14, 1")
    A("s_waitcnt lgkmcnt(0)")
    for q in range(8):
        A(f"v_add_f32 v{ES+q}, v{ES+q}, v{ES+8+q}")
    A(f"v_add_f32 v{LW+6}, v{LW+6}, v{LW+7}")
    for q in range(8):
        A(f"v_mul_f32 v{ES+q}, v{ES+q}, v{LW+4}")
    for q in range(4):
        A(f"v_perm_b32 v{LW+q}, v{LW+5}, v{LW+6}, s{86+q}")
    A(f"s_cmp_ge_u32 s{sW}, 6")
    A(f"s_cbranch_scc1 L_tail_e1")
    R = vK
    def M(i):
        o = vO + 4*i
        A(f"v_mfma_f32_16x16x32_bf16 v[{o}:{o+3}], v[{tC+4*i}:{tC+4*i+3}], v[{vPC}:{vPC+3}], v[{o}:{o+3}]")
    def PM(i):
        perms(4, tC, 4, 2, [i])
    def late_tail(e):
        od = [4*(1-e) + x for x in range(4)] + [4*e + x for x in range(4)]
        W(39)
        if stamps: A(f"s_memrealtime s[{sST+6}:{sST+7}]")
        PM(od[0]); PM(od[1])
        for x in range(5):
            PM(od[x+2]); M(od[x])
        pack(od[0])
        A(f"ds_write_b128 v37, v[{vO+4*od[0]}:{vO+4*od[0]+3}] offset:{LDS_X}")
        PM(od[7]); M(od[5]); M(od[6])
        pack(od[2])
        M(od[7])
        A(f"ds_write_b128 v37, v[{vO+4*od[2]}:{vO+4*od[2]+3}] offset:{LDS_X+1024}")
        A(f"ds_write_b32 v36, v14 offset:{LDS_N+16}")
        A(f"ds_read_b32 v14, v15 offset:{LDS_N+16}")
        A(f"ds_read_b128 v[{R}:{R+3}], v32 offset:{LDS_X}")
        A(f"ds_read_b128 v[{R+4}:{R+7}], v32 offset:{LDS_X+1024}")
        pack(od[4])
        for q in range(4):
            A(f"v_fmac_f32 v{ES+q}, v{vO+4*od[4]+q}, v{LW+4}")
        pack(od[6])
        for q in range(4):
            A(f"v_fmac_f32 v{ES+4+q}, v{vO+4*od[6]+q}, v{LW+4}")
    def fin():
        if stamps: A("s_branch L_fin")
        else: A("s_endpgm")
    def join(e):
        if stamps:
            A("s_waitcnt lgkmcnt(0)")
        else:
            A("s_waitcnt lgkmcnt(2)")
        A(f"v_cmp_eq_u32 vcc, 0, v14")
        A(f"s_cbranch_vccz L_paired{e}")
        A.label(f"L_pair{e}")
        A(f"ds_read_b32 v14, v15 offset:{LDS_N+16}")
        A(f"ds_read_b128 v[{R}:{R+3}], v32 offset:{LDS_X}")
        A(f"ds_read_b128 v[{R+4}:{R+7}], v32 offset:{LDS_X+1024}")
        A("s_waitcnt lgkmcnt(2)")
        A(f"v_cmp_eq_u32 vcc, 0, v14")
        A(f"s_cbranch_vccnz L_pair{e}")
        A.label(f"L_paired{e}")
        for n in range(2):
            A(f"s_waitcnt lgkmcnt({1-n})")
            for q in range(4):
                A(f"v_fmac_f32 v{ES+4*n+q}, v{R+4*n+q}, v{LW+4}")
            for q in range(4):
                A(f"v_and_or_b32 v{ES+4*n+q}, v{ES+4*n+q}, s80, v{LW+q}")
            A(f"buffer_store_dwordx4 v[{ES+4*n}:{ES+4*n+3}], v34, s[{sWS}:{sWS+3}], 0 offen offset:{1024*n} {spol}")
        if stamps: A(f"s_memrealtime s[{sST+4}:{sST+5}]")
        fin()
    late_tail(0)
    join(0)
    A.label("L_tail_e1")
    late_tail(1)
    join(1)
    A.label("L_tail_other")
    W(39)
    if stamps: A(f"s_memrealtime s[{sST+6}:{sST+7}]")
    PM(0); PM(1)
    for i in range(8):
        if i + 2 < 8: PM(i+2)
        M(i)
    A(f"s_cmp_lg_u32 s{sMORE}, 0")
    A(f"s_cbranch_scc1 L_again")
    A.c("---- early waves: publish the max, later the state rescaled to the common max")
    A(f"ds_write_b32 v43, v{vMRUN} offset:{LDS_M}")
    A(f"ds_write_b32 v36, v5 offset:{LDS_N+16}")
    for j in range(4):
        pack(2*j)
    A(f"s_cmp_ge_u32 s{sW}, 3")
    A(f"s_cbranch_scc1 L_eA")
    consumer_addr(A)
    A(f"s_cmp_eq_u32 s{sW}, 2")
    A(f"s_cbranch_scc1 L_eA")
    A.c("waves 0,1: fetch the launch nonce (written by WG 0 at its start) and pass it on through LDS")
    A(f"s_mov_b64 exec, 1")
    A(f"s_mov_b32 s72, 0x100000")
    A.label("L_getnonce")
    A(f"buffer_load_dwordx2 v[92:93], v5, s[{sDBG}:{sDBG+3}], 0 offen offset:192 sc1")
    A(f"s_sub_u32 s72, s72, 1")
    A(f"s_cbranch_scc1 L_gotnonce")
    A("s_waitcnt vmcnt(0)")
    A(f"v_cmp_eq_u32 vcc, 0, v93")
    A(f"s_cbranch_vccnz L_getnonce")
    A.label("L_gotnonce")
    A("s_waitcnt vmcnt(0)")
    A(f"v_readfirstlane_b32 s{sH}, v92")
    A(f"v_readfirstlane_b32 s{sH+1}, v93")
    A(f"ds_write_b64 v5, v[92:93] offset:{LDS_N}")
    A(f"s_mov_b64 exec, -1")
    tagword(A, cB, 124)
    A.label("L_eA")
    A("s_waitcnt lgkmcnt(0)")
    A(f"s_barrier")
    A(f"ds_read_b128 v[{vQ}:{vQ+3}], v1 offset:{LDS_M}")
    A(f"ds_read_b32 v95, v5 offset:{LDS_N+4}")
    A("s_waitcnt lgkmcnt(1)")
    A(f"v_max3_f32 v14, v{vQ}, v{vQ+1}, v{vQ+2}")
    A(f"v_max_f32 v14, v14, v{vQ+3}")
    A(f"v_sub_f32 v14, v{LW+6}, v14")
    A(f"v_exp_f32 v14, v14")
    A.nop(1)
    A(f"v_mul_f32 v{vL}, v{vL}, v14")
    A(f"ds_write_b32 v43, v{vL} offset:{LDS_L}")
    for j in range(4):
        for q in range(4):
            A(f"v_mul_f32 v{vO+8*j+q}, v{vO+8*j+q}, v14")
        A(f"ds_write_b128 v39, v[{vO+8*j}:{vO+8*j+3}] offset:{LDS_XE+1024*j}")
    A(f"v_mov_b32 v94, 1")
    A("s_waitcnt lgkmcnt(0)")
    A(f"s_barrier")
    if dbg == 1:
        A(f"s_branch L_fin")
    A(f"s_cmp_ge_u32 s{sW}, 3")
    A(f"s_cbranch_scc1 L_fin")
    A(f"s_cmp_eq_u32 s{sW}, 2")
    A(f"s_cbranch_scc1 L_w2")
    if dbg == 2:
        A(f"s_branch L_fin")
    consumer(A, "L_c", stamps, sleep, lpol)
    A.label("L_w2")
    A(f"s_mov_b64 exec, 1")
    if stamps: A(f"s_memrealtime s[{sST+4}:{sST+5}]")
    A(f"buffer_atomic_add v94, v{cFL}, s[{sWS}:{sWS+3}], 0 offen sc0 sc1")
    A("s_waitcnt vmcnt(0)")
    if stamps: A(f"s_memrealtime s[{sST+8}:{sST+9}]")
    A(f"v_cmp_eq_u32 vcc, 63, v94")
    A(f"s_cbranch_vccz L_fin")
    A(f"buffer_store_dword v95, v{cFL}, s[{sWS}:{sWS+3}], 0 offen offset:{FLAG_OFF} sc0 sc1")
    A.label("L_c_end")
    A.label("L_fin")
    if stamps:
        A("s_waitcnt vmcnt(0)")
        A(f"s_memrealtime s[{sST+10}:{sST+11}]")
        A("s_waitcnt lgkmcnt(0)")
        A("s_mov_b64 exec, 1")
        for i in range(6):
            A(f"v_mov_b32 v{16+i}, s{sST+2*i}")
        A("s_getreg_b32 s62, hwreg(HW_REG_XCC_ID)")
        A("v_mov_b32 v22, s62")
        A("v_mov_b32 v23, s72")
        A(f"s_lshl_b32 s62, s2, 3")
        A(f"s_add_u32 s62, s62, s{sW}")
        A(f"s_lshl_b32 s62, s62, 5")
        A(f"s_add_u32 s62, s62, {STAMP_BASE}")
        A(f"v_mov_b32 v1, s62")
        A(f"buffer_store_dwordx4 v[16:19], v1, s[{sWS}:{sWS+3}], 0 offen")
        A(f"buffer_store_dwordx4 v[20:23], v1, s[{sWS}:{sWS+3}], 0 offen offset:16")
    A.label("L_end")
    A("s_endpgm")
    A.c("---- WG 0, wave 0: clear the arrival counters, then publish this launch's nonce")
    A.label("L_mknonce")
    A(f"s_mul_i32 s86, s{sH}, 0x9E3779B9")
    A(f"s_mul_i32 s87, s{sH+1}, 0x7F4A7C15")
    A(f"s_add_u32 s86, s86, s87")
    A(f"s_mul_hi_u32 s87, s{sH}, 0x7F4A7C15")
    A(f"s_add_u32 s86, s86, s87")
    A(f"s_mul_i32 s{sH}, s{sH}, 0x7F4A7C15")
    A(f"s_or_b32 s{sH+1}, s86, 0x80000000")
    A(f"v_mov_b32 v92, s{sH}")
    A(f"v_mov_b32 v93, s{sH+1}")
    A(f"v_mov_b32 v94, 0")
    A(f"v_mul_u32_u24 v95, {CNT_STRIDE}, v{vLANE}")
    A(f"v_add_u32 v95, {CNT_BASE}, v95")
    A(f"s_mov_b64 exec, 15")
    A(f"global_store_dword v95, v94, s[22:23] sc0 sc1")
    A(f"s_waitcnt vmcnt(0)")
    A(f"s_mov_b64 exec, 1")
    A(f"global_store_dwordx2 v94, v[92:93], s[20:21] offset:192 sc0 sc1")
    A(f"s_mov_b64 exec, -1")
    A(f"s_branch L_nonced")
    A.c("---- rare paths (second round, long contexts)")
    A.label("L_again")
    for k in range(3):
        A(f"s_load_dword s{sBT+k}, s[{sBTA}:{sBTA+1}], {(5+k)*1024}")
    A(f"s_add_u32 s{sPB}, s{sPB}, 1280")
    A("s_waitcnt vmcnt(0) lgkmcnt(0)")
    A.nop(8)
    A("s_branch L_round")
    A.label("L_rescale")
    A(f"v_sub_f32 v15, v{vMRUN}, v{vMC}")
    A(f"v_exp_f32 v15, v15")
    A.nop(1)
    for i in range(36):
        A(f"v_mul_f32 v{vO+i}, v{vO+i}, v15")
    A("s_branch L_rescaled")


def kd(name, vgpr, sgpr=102):
    return f""".amdhsa_kernel {name}
  .amdhsa_next_free_vgpr {vgpr}
  .amdhsa_next_free_sgpr {sgpr}
  .amdhsa_accum_offset {vgpr}
  .amdhsa_group_segment_fixed_size 0
  .amdhsa_kernarg_size 64
  .amdhsa_user_sgpr_count 2
  .amdhsa_user_sgpr_kernarg_segment_ptr 1
  .amdhsa_system_sgpr_workgroup_id_x 1
.end_amdhsa_kernel
"""


DOC = """;
;  those publish normalised partials to d_ws as 16-B granules {4 x 20-bit value, lse byte, 4 tag bits}.
"""
OPOL = ['']
def gen(opol='', **kw):
    OPOL[0] = opol
    A = G()
    k1 = NAME + "_kernel"
    out = HEADER
    out += f"; @launch grid=(256,1,1) block=(512,1,1) lds={LDS_TOTAL}\n"
    out += DOC
    out += '.amdgcn_target "amdgcn-amd-amdhsa--gfx950"\n.text\n'
    main_kernel(A, k1, **kw)
    out += "\n".join(A.L) + "\n"
    out += f".fill (8192 - (. - {k1})) / 4, 4, 0xbf810000\n"
    out += '.section .rodata,"a"\n.p2align 6\n' + kd(k1, 256)
    return out


if __name__ == "__main__":
    kw = eval("dict(" + (sys.argv[2] if len(sys.argv) > 2 else "") + ")")
    open(sys.argv[1], "w").write(gen(**kw))
```

```python
import sys, struct

NAME = "standalone__paged_block_table_kv_pagedattention__decode"
KV_BYTES = 4100 * 16384
WS_BYTES = 268697600
GS = 512 << 10
LSE_BASE = 2 << 20
CNT_BASE = (2 << 20) + (128 << 10)
CNT_STRIDE = 4096 + 256
FLAG_OFF = 2048
STAMP_BASE = 4 << 20
NEG = 0xF149F2CA
SCALE = struct.unpack("<I", struct.pack("<f", 1.4426950408889634 / (128 ** 0.5)))[0]
HEADER = open("cdna_kernels/" + NAME + ".s.ref").read().split("; Override launch geometry")[0]
LDS_N = 0
LDS_M = 64
LDS_L = LDS_M + 512
LDS_X = 2048
LDS_XE = LDS_X + 8192
LDS_TOTAL = LDS_XE + 16384


class G:
    def __init__(self):
        self.L = []
    def __call__(self, s):
        self.L.append("  " + s)
    def label(self, s):
        self.L.append(s + ":")
    def c(self, s):
        self.L.append("  ; " + s)
    def nop(self, n):
        while n > 0:
            k = min(n, 16)
            self(f"s_nop {k-1}")
            n -= k


def srd(A, d, lo, nbytes):
    A(f"s_mov_b32 s{d}, s{lo}")
    A(f"s_mov_b32 s{d+1}, s{lo+1}")
    A(f"s_mov_b32 s{d+2}, {nbytes}")
    A(f"s_mov_b32 s{d+3}, 0x20000")


DPPM = "row_mask:0xf bank_mask:0xf"
vLANE, vR, vG = 2, 3, 4
vKOFF, vVOFF, vADDR = 6, 7, 8
vT0, vT1, vNEG, vMRUN, vMC = 9, 10, 11, 12, 13
vQ = 16
vC = 24
vPA, vPB, vPC = 40, 44, 48
vONE = 52
vO = 56
vL = 88
vK = 96
vV = 176
sW, sPR, sB, sSI, sWI = 3, 4, 5, 6, 7
sK, sV, sWS, sQ, sOUT, sDBG = 24, 28, 32, 36, 40, 44
sBT = 48
sLL = 53
sBTA = 54
sEFF, s8K, sSC, sSELLO, sSELHI = 56, 57, 58, 59, 60
sPB = 61
sOFF, sNV = 66, 71
sMORE = 76
sKVH = 77
sH = 84
sST = 90
cA, cB, cOUT, cFL, cLS, cG, cACC = 96, 97, 98, 99, 100, 104, 120


def tagword(A, dst, tmp):
    A(f"v_and_b32 v{tmp}, 2, v{vLANE}")
    A(f"v_cmp_eq_u32 vcc, 0, v{tmp}")
    A(f"v_mov_b32 v{dst}, s{sH}")
    A(f"v_mov_b32 v{tmp}, s{sH+1}")
    A(f"v_cndmask_b32 v{dst}, v{tmp}, v{dst}, vcc")
    A(f"v_and_b32 v{tmp}, 1, v{vLANE}")
    A(f"v_lshlrev_b32 v{tmp}, 2, v{tmp}")
    A(f"v_lshrrev_b32 v{dst}, v{tmp}, v{dst}")
    A(f"v_and_b32 v{dst}, 0x0f0f0f0f, v{dst}")


def consumer_addr(A):
    A.c("final-combine addresses: line si of the group, half = wave")
    A(f"s_and_b32 s62, s2, 3")
    A(f"s_mul_i32 s63, s62, {CNT_STRIDE}")
    A(f"s_add_u32 s63, s63, {CNT_BASE}")
    A(f"v_mov_b32 v{cFL}, s63")
    A(f"s_mul_i32 s63, s62, {GS}")
    A(f"s_lshl_b32 s64, s{sSI}, 7")
    A(f"s_add_u32 s63, s63, s64")
    A(f"s_lshl_b32 s64, s{sW}, 6")
    A(f"s_add_u32 s63, s63, s64")
    A(f"v_lshrrev_b32 v124, 2, v{vLANE}")
    A(f"v_and_b32 v125, 3, v{vLANE}")
    A(f"v_lshlrev_b32 v{cA}, 13, v124")
    A(f"v_lshl_add_u32 v{cA}, v125, 4, v{cA}")
    A(f"v_add_u32 v{cA}, s63, v{cA}")
    A(f"s_mov_b32 s8, 0x20000")
    A(f"s_mov_b32 s9, 0x40000")
    A(f"s_mov_b32 s10, 0x60000")
    A(f"s_mov_b32 s11, 0x05010400")
    A(f"s_lshr_b32 s64, s{sSI}, 5")
    A(f"s_lshl_b32 s67, s{sPR}, 1")
    A(f"s_add_u32 s67, s67, s64")
    A(f"s_lshl_b32 s67, s67, 3")
    A(f"s_lshl_b32 s66, s{sW}, 2")
    A(f"s_add_u32 s67, s67, s66")
    A(f"s_lshr_b32 s66, s2, 1")
    A(f"s_xor_b32 s66, s66, s64")
    A(f"s_and_b32 s66, s66, 1")
    A(f"s_lshl_b32 s66, s66, 5")
    A(f"s_add_u32 s67, s67, s66")
    A(f"s_lshl_b32 s67, s67, 7")
    A(f"s_bfe_u32 s66, s{sSI}, 0x20001")
    A(f"s_lshl_b32 s66, s66, 5")
    A(f"s_add_u32 s67, s67, s66")
    A(f"s_bfe_u32 s66, s{sSI}, 0x20003")
    A(f"s_lshl_b32 s66, s66, 1")
    A(f"s_add_u32 s67, s67, s66")
    A(f"s_and_b32 s66, s{sSI}, 1")
    A(f"s_add_u32 s67, s67, s66")
    A(f"v_lshlrev_b32 v{cOUT}, 7, v125")
    A(f"v_lshrrev_b32 v124, 4, v{vLANE}")
    A(f"v_lshl_add_u32 v{cOUT}, v124, 3, v{cOUT}")
    A(f"v_add_u32 v{cOUT}, s67, v{cOUT}")
    A(f"v_lshlrev_b32 v{cOUT}, 1, v{cOUT}")


def consumer(A, lab, stamps, sleep, lpol):
    so = ["0", "s8", "s9", "s10"]
    t0, t1, t2, t3 = 124, 125, 126, 127
    pG = [64, 66, 68, 70]
    def P(x): return f"s[{x}:{x+1}]"
    def ld_g(j):
        r = cG + 4*j
        A(f"buffer_load_dwordx4 v[{r}:{r+3}], v{cA}, s[{sWS}:{sWS+3}], {so[j]} offen {lpol}")
    def chk_g(j):
        r = cG + 4*j
        A(f"v_perm_b32 v{t0}, v{r+1}, v{r}, s11")
        A(f"v_perm_b32 v{t1}, v{r+3}, v{r+2}, s11")
        A(f"v_perm_b32 v{t2}, v{t1}, v{t0}, s{sSELHI}")
        A(f"v_perm_b32 v{cLS+j}, v{t1}, v{t0}, s{sSELLO}")
        A(f"v_and_b32 v{t2}, 0x0f0f0f0f, v{t2}")
        A(f"v_cmp_ne_u32_e64 {P(pG[j])}, v{t2}, v{cB}")
        if j < 2:
            for q in range(4):
                A(f"v_and_b32 v{r+q}, s80, v{r+q}")
    A(f"s_mov_b32 s72, 0x100000")
    A.c("wait for the group's go flag (a hint only: the tags decide)")
    A(f"s_mov_b64 exec, 1")
    A.label(f"{lab}_flag")
    A(f"buffer_load_dword v{t0}, v{cFL}, s[{sWS}:{sWS+3}], 0 offen offset:{FLAG_OFF} sc1")
    A(f"s_sub_u32 s72, s72, 1")
    A(f"s_cbranch_scc1 {lab}_end")
    A("s_waitcnt vmcnt(0)")
    A(f"v_cmp_eq_u32 vcc, s{sH+1}, v{t0}")
    if sleep:
        A(f"s_cbranch_vccnz {lab}_go")
        A(f"s_sleep {sleep}")
        A(f"s_branch {lab}_flag")
    else:
        A(f"s_cbranch_vccz {lab}_flag")
    A.label(f"{lab}_go")
    if stamps:
        A(f"s_memrealtime s[{sST+4}:{sST+5}]")
        A(f"s_mov_b32 s72, 0x100000")
    A(f"s_mov_b64 exec, -1")
    for j in range(4): ld_g(j)
    for j in range(4):
        A(f"s_waitcnt vmcnt({3-j})")
        chk_g(j)
    A.label(f"{lab}_test")
    A(f"s_or_b64 s[74:75], {P(pG[0])}, {P(pG[1])}")
    A(f"s_or_b64 s[62:63], {P(pG[2])}, {P(pG[3])}")
    A(f"s_or_b64 s[74:75], s[74:75], s[62:63]")
    A(f"s_cbranch_scc1 {lab}_retry")
    A(f"s_mov_b64 exec, -1")
    if stamps:
        A(f"s_memrealtime s[{sST+8}:{sST+9}]")
    L = cLS
    def clean(lo, hi):
        for x in range(lo, hi):
            A(f"v_and_b32 v{cG+x}, s80, v{cG+x}")
    A(f"v_max3_f32 v{t0}, v{L}, v{L+1}, v{L+2}")
    A(f"v_max_f32 v{t0}, v{t0}, v{L+3}")
    clean(8, 10)
    A(f"v_max_f32_dpp v{t0}, v{t0}, v{t0} row_ror:4 {DPPM}")
    clean(10, 12)
    A(f"v_max_f32_dpp v{t0}, v{t0}, v{t0} row_ror:8 {DPPM}")
    A(f"v_mov_b32 v{t1}, v{t0}")
    clean(12, 14)
    A(f"v_permlane16_swap_b32 v{t0}, v{t1}")
    A(f"v_max_f32 v{t0}, v{t0}, v{t1}")
    A(f"v_mov_b32 v{t1}, v{t0}")
    clean(14, 16)
    A(f"v_permlane32_swap_b32 v{t0}, v{t1}")
    A(f"v_max_f32 v{t0}, v{t0}, v{t1}")
    for j in range(4):
        A(f"v_sub_f32 v{L+j}, v{L+j}, v{t0}")
    for j in range(4):
        A(f"v_exp_f32 v{L+j}, v{L+j}")
    acc = cACC
    def wsum(j):
        op = "v_mul_f32" if j == 0 else "v_fmac_f32"
        for q in range(4):
            A(f"{op} v{acc+q}, v{L+j}, v{cG+4*j+q}")
    wsum(0)
    A(f"v_add_f32 v{t1}, v{L}, v{L+1}")
    A(f"v_add_f32 v{t2}, v{L+2}, v{L+3}")
    A(f"v_add_f32 v{t1}, v{t1}, v{t2}")
    wsum(1)
    A(f"v_add_f32_dpp v{t1}, v{t1}, v{t1} row_ror:4 {DPPM}")
    wsum(2)
    A(f"v_add_f32_dpp v{t1}, v{t1}, v{t1} row_ror:8 {DPPM}")
    wsum(3)
    A(f"v_mov_b32 v{t2}, v{t1}")
    A(f"v_permlane16_swap_b32 v{acc}, v{acc+1}")
    A(f"v_permlane16_swap_b32 v{acc+2}, v{acc+3}")
    A(f"v_permlane16_swap_b32 v{t1}, v{t2}")
    A(f"v_add_f32 v{acc}, v{acc}, v{acc+1}")
    A(f"v_add_f32 v{acc+2}, v{acc+2}, v{acc+3}")
    A(f"v_add_f32 v{t1}, v{t1}, v{t2}")
    A(f"v_mov_b32 v{t2}, v{t1}")
    A(f"v_permlane32_swap_b32 v{acc}, v{acc+2}")
    A.nop(1)
    A(f"v_permlane32_swap_b32 v{t1}, v{t2}")
    A(f"v_add_f32 v{acc}, v{acc}, v{acc+2}")
    A(f"v_add_f32 v{t1}, v{t1}, v{t2}")
    A(f"v_rcp_f32 v{t1}, v{t1}")
    A(f"v_add_f32_dpp v{acc}, v{acc}, v{acc} row_ror:4 {DPPM}")
    A(f"s_mov_b32 s62, 0x000f000f")
    A(f"s_mov_b32 s63, 0x000f000f")
    A(f"v_add_f32_dpp v{acc}, v{acc}, v{acc} row_ror:8 {DPPM}")
    A(f"v_mul_f32 v{acc}, v{acc}, v{t1}")
    A(f"v_cvt_pk_bf16_f32 v{acc}, v{acc}, v{acc}")
    A(f"s_mov_b64 exec, s[62:63]")
    A(f"buffer_store_short v{acc}, v{cOUT}, s[{sOUT}:{sOUT+3}], 0 offen {OPOL[0]}")
    if stamps: A(f"s_branch {lab}_end")
    else: A("s_endpgm")
    A.label(f"{lab}_retry")
    A(f"s_sub_u32 s72, s72, 1")
    A(f"s_cbranch_scc1 {lab}_end")
    A.c("a 4-lane group (64 B of one producer) is accepted or re-read as a whole")
    A(f"s_mov_b32 s62, 0x11111111")
    A(f"s_mov_b32 s63, 0x11111111")
    for j in range(4):
        A(f"s_lshr_b64 s[74:75], {P(pG[j])}, 2")
        A(f"s_or_b64 {P(pG[j])}, {P(pG[j])}, s[74:75]")
        A(f"s_lshr_b64 s[74:75], {P(pG[j])}, 1")
        A(f"s_or_b64 {P(pG[j])}, {P(pG[j])}, s[74:75]")
        A(f"s_and_b64 {P(pG[j])}, {P(pG[j])}, s[62:63]")
        A(f"s_mul_i32 s{pG[j]}, s{pG[j]}, 15")
        A(f"s_mul_i32 s{pG[j]+1}, s{pG[j]+1}, 15")
        A(f"s_mov_b64 exec, {P(pG[j])}")
        A(f"s_cbranch_execz {lab}_s{j+1}")
        ld_g(j)
        A.label(f"{lab}_s{j+1}")
    A("s_waitcnt vmcnt(0)")
    for j in range(4):
        A(f"s_mov_b64 exec, {P(pG[j])}")
        chk_g(j)
    A(f"s_branch {lab}_test")


def main_kernel(A, name, pol="nt", stamps=False, sleep=2, spol="sc0 sc1", lpol="sc1", b1pos=3, v4pos=(0, 1, 2, 3), dbg=0, half=0, sched=0, prio=0, rot=None, early_atom=0):
    A.L.append(f".globl {name}")
    A.L.append(".p2align 8")
    A.L.append(f".type {name},@function")
    A.label(name)
    A("s_load_dwordx16 s[8:23], s[0:1], 0")
    A("s_cmp_ge_u32 s2, 256")
    A("s_cbranch_scc1 L_end")
    A.c("pull this kernel's code into L2 (one 1 KiB piece per wave)")
    A("s_getpc_b64 s[62:63]")
    A.label("L_pc")
    A("v_lshlrev_b32 v1, 4, v0")
    A(f"s_sub_u32 s62, s62, L_pc-{name}")
    A(f"s_subb_u32 s63, s63, 0")
    A(f"global_load_dwordx4 v[{vC}:{vC+3}], v1, s[62:63]")
    if stamps:
        A(f"s_memrealtime s[{sST}:{sST+1}]")
    A("v_lshrrev_b32 v1, 6, v0")
    A(f"v_and_b32 v{vLANE}, 63, v0")
    A(f"v_readfirstlane_b32 s{sW}, v1")
    A(f"v_and_b32 v{vR}, 15, v0")
    A(f"v_lshrrev_b32 v{vG}, 4, v{vLANE}")
    A(f"s_and_b32 s{sPR}, s2, 1")
    A(f"s_lshr_b32 s{sB}, s2, 1")
    A(f"s_xor_b32 s{sB}, s{sB}, s{sW}")
    A(f"s_and_b32 s{sB}, s{sB}, 1")
    A(f"s_lshr_b32 s{sSI}, s2, 2")
    A(f"s_lshr_b32 s{sWI}, s{sW}, 1")
    A(f"s_lshl_b32 s{sWI}, s{sWI}, 6")
    if rot is None:
        A(f"s_mul_i32 s62, s{sB}, 63")
        A(f"s_xor_b32 s62, s62, s{sSI}")
    else:
        A(f"s_mul_i32 s62, s{sB}, {rot}")
        A(f"s_add_u32 s62, s62, s{sSI}")
        A(f"s_and_b32 s62, s62, 63")
    A(f"s_add_u32 s{sWI}, s{sWI}, s62")
    A(f"s_lshl_b32 s62, s{sB}, 11")
    A(f"s_add_u32 s62, s62, s{sWI}")
    A(f"s_lshl_b32 s64, s62, 2")
    A(f"s_lshl_b32 s65, s{sB}, 2")
    A("s_waitcnt lgkmcnt(0)")
    A(f"s_add_u32 s{sBTA}, s14, s64")
    A(f"s_addc_u32 s{sBTA+1}, s15, 0")
    A(f"s_load_dword s{sEFF}, s[16:17], s65")
    for k in (4, 0, 1, 2, 3):
        A(f"s_load_dword s{sBT+k}, s[{sBTA}:{sBTA+1}], {k*1024}")
    A(f"s_or_b32 s62, s2, s{sW}")
    A(f"s_cbranch_scc0 L_mknonce")
    A.label("L_nonced")
    if prio:
        A(f"s_cmp_lt_u32 s{sW}, 4")
        A(f"s_cbranch_scc{1 if prio == 1 else 0} L_noprio")
        A(f"s_setprio 1")
        A.label("L_noprio")
    A(f"s_and_b32 s{sKVH}, s{sW}, 1")
    A(f"s_lshl_b32 s62, s{sPR}, 1")
    A(f"s_add_u32 s{sKVH}, s{sKVH}, s62")
    A(f"v_lshrrev_b32 v5, 1, v{vR}")
    A(f"v_lshlrev_b32 v{vKOFF}, 10, v5")
    A(f"v_lshl_add_u32 v{vKOFF}, v{vG}, 5, v{vKOFF}")
    A(f"v_and_b32 v5, 1, v{vR}")
    A(f"v_lshl_add_u32 v{vKOFF}, v5, 4, v{vKOFF}")
    A(f"s_lshl_b32 s66, s{sKVH}, 8")
    A(f"v_add_u32 v{vKOFF}, s66, v{vKOFF}")
    A(f"v_lshlrev_b32 v{vVOFF}, 11, v{vG}")
    A(f"v_lshl_add_u32 v{vVOFF}, v{vR}, 4, v{vVOFF}")
    A(f"v_add_u32 v{vVOFF}, s66, v{vVOFF}")
    A(f"v_and_b32 v5, 7, v{vR}")
    A(f"v_lshlrev_b32 v14, 8, v5")
    A(f"v_lshl_add_u32 v14, v{vG}, 5, v14")
    A(f"v_lshrrev_b32 v5, 3, v{vR}")
    A(f"v_lshl_add_u32 v14, v5, 4, v14")
    A(f"s_lshl_b32 s67, s{sB}, 13")
    A(f"s_lshl_b32 s68, s{sKVH}, 11")
    A(f"s_add_u32 s67, s67, s68")
    srd(A, sK, 10, KV_BYTES)
    srd(A, sQ, 8, 16384)
    A(f"s_movk_i32 s{s8K}, 0x2000")
    A(f"s_mov_b32 s{sPB}, s{sWI}")
    A("s_waitcnt lgkmcnt(0)")
    if stamps:
        A(f"s_memrealtime s[{sST+2}:{sST+3}]")
    A.c("eff = cl<=0 ? 32768 : min(cl, 32768);  cl<=0: Q reads as zero (uniform softmax over all keys)")
    A(f"s_cmp_le_i32 s{sEFF}, 0")
    A(f"s_cselect_b32 s67, 0x80000000, s67")
    A(f"s_cselect_b32 s{sEFF}, 0x8000, s{sEFF}")
    A(f"s_min_i32 s{sEFF}, s{sEFF}, 0x8000")
    A(f"v_add_u32 v14, s67, v14")
    A(f"buffer_load_dwordx4 v[{vQ}:{vQ+3}], v14, s[{sQ}:{sQ+3}], 0 offen")
    A(f"buffer_load_dwordx4 v[{vQ+4}:{vQ+7}], v14, s[{sQ}:{sQ+3}], 0 offen offset:128")
    A.label("L_round")
    ks = [4, 0, 1, 2, 3]
    A(f"s_lshl_b32 s62, s{sPB}, 4")
    A(f"s_sub_i32 s62, s{sEFF}, s62")

    def slot_setup(s):
        k = ks[s]
        A(f"s_sub_i32 s{sNV+s}, s62, {k*4096}")
        A(f"s_lshl_b32 s{sOFF+s}, s{sBT+k}, 14")
        A(f"s_cmp_gt_i32 s{sNV+s}, 0")
        A(f"s_cselect_b32 s{sOFF+s}, s{sOFF+s}, 0x80000000")

    def kload(s):
        A(f"v_add_u32 v{vADDR}, s{sOFF+s}, v{vKOFF}")
        for n, (so, o) in enumerate([("0", 0), ("0", 128), (f"s{s8K}", 0), (f"s{s8K}", 128)]):
            r = vK + 16*s + 4*n
            A(f"buffer_load_dwordx4 v[{r}:{r+3}], v{vADDR}, s[{sK}:{sK+3}], {so} offen offset:{o} {pol}")

    def vload(s):
        A(f"v_add_u32 v{vADDR}, s{sOFF+s}, v{vVOFF}")
        for n, (so, o) in enumerate([("0", 0), ("0", 1024), (f"s{s8K}", 0), (f"s{s8K}", 1024)]):
            r = vV + 16*s + 4*n
            A(f"buffer_load_dwordx4 v[{r}:{r+3}], v{vADDR}, s[{sV}:{sV+3}], {so} offen offset:{o} {pol}")

    def qk_mfma(s):
        c = vC + 8*(s & 1)
        k = vK + 16*s
        A(f"v_mfma_f32_16x16x32_bf16 v[{c}:{c+3}], v[{k}:{k+3}], v[{vQ}:{vQ+3}], 0")
        A(f"v_mfma_f32_16x16x32_bf16 v[{c+4}:{c+7}], v[{k+8}:{k+11}], v[{vQ}:{vQ+3}], 0")
        A(f"v_mfma_f32_16x16x32_bf16 v[{c}:{c+3}], v[{k+4}:{k+7}], v[{vQ+4}:{vQ+7}], v[{c}:{c+3}]")
        A(f"v_mfma_f32_16x16x32_bf16 v[{c+4}:{c+7}], v[{k+12}:{k+15}], v[{vQ+4}:{vQ+7}], v[{c+4}:{c+7}]")

    def qk_post(s):
        c = vC + 8*(s & 1)
        x = vK + 16*s
        A(f"s_sub_i32 s63, s{sNV+s}, 8")
        A(f"v_cmp_gt_i32_e64 s[80:81], s{sNV+s}, v{vT0}")
        A(f"v_cmp_gt_i32_e64 s[82:83], s{sNV+s}, v{vT1}")
        A(f"v_add_f32_dpp v{x}, v{c+1}, v{c} row_ror:8 {DPPM}")
        A(f"v_add_f32_dpp v{x+1}, v{c+3}, v{c+2} row_ror:8 {DPPM}")
        A(f"v_add_f32_dpp v{x+2}, v{c+5}, v{c+4} row_ror:8 {DPPM}")
        A(f"v_add_f32_dpp v{x+3}, v{c+7}, v{c+6} row_ror:8 {DPPM}")
        A(f"v_mul_f32 v{x}, s{sSC}, v{x}")
        A(f"v_mul_f32 v{x+1}, s{sSC}, v{x+1}")
        A(f"v_cndmask_b32_e64 v{x}, v{vNEG}, v{x}, s[80:81]")
        A(f"v_cndmask_b32_e64 v{x+1}, v{vNEG}, v{x+1}, s[82:83]")
        A(f"v_cmp_gt_i32_e64 s[80:81], s63, v{vT0}")
        A(f"v_cmp_gt_i32_e64 s[82:83], s63, v{vT1}")
        A(f"v_mul_f32 v{x+2}, s{sSC}, v{x+2}")
        A(f"v_mul_f32 v{x+3}, s{sSC}, v{x+3}")
        A(f"v_cndmask_b32_e64 v{x+2}, v{vNEG}, v{x+2}, s[80:81]")
        A(f"v_cndmask_b32_e64 v{x+3}, v{vNEG}, v{x+3}, s[82:83]")
        if s == 0:
            A(f"v_max3_f32 v14, v{x}, v{x+1}, v{x+2}")
            A(f"v_max_f32 v14, v14, v{x+3}")
        else:
            A(f"v_max3_f32 v14, v14, v{x}, v{x+1}")
            A(f"v_max3_f32 v14, v14, v{x+2}, v{x+3}")

    issued = [0]
    def W(idx):
        A(f"s_waitcnt vmcnt({issued[0] - 1 - idx})")
    def KL(s):
        kload(s); issued[0] += 4
    def VL(s):
        vload(s); issued[0] += 4

    for s in range(5):
        slot_setup(s)
        KL(s)
    A.c("round flags: MORE = another round follows; LL = late wave in its last round")
    A(f"s_cmp_gt_i32 s62, {5*4096}")
    A(f"s_cselect_b32 s{sMORE}, 1, 0")
    A(f"s_cselect_b32 s63, 0, s{sW}")
    A(f"s_cmp_ge_u32 s63, 4")
    A(f"s_cselect_b32 s{sLL}, 1, 0")
    srd(A, sV, 12, KV_BYTES)
    srd(A, sWS, 22, WS_BYTES)
    srd(A, sOUT, 18, 16384)
    srd(A, sDBG, 20, 256)
    A(f"s_mov_b32 s{sSC}, {SCALE:#x}")
    A(f"s_mov_b32 s{sSELLO}, 0x05040100")
    A(f"s_mov_b32 s{sSELHI}, 0x07060302")
    A(f"v_lshlrev_b32 v{vT0}, 1, v{vG}")
    A(f"v_or_b32 v{vT1}, 1, v{vT0}")
    A(f"v_mov_b32 v{vNEG}, {NEG:#x}")
    A(f"v_mov_b32 v{vONE}, 0x3f803f80")
    for i in range(1, 4):
        A(f"v_mov_b32 v{vONE+i}, v{vONE}")
    A(f"s_and_b32 s64, s{sW}, 1")
    A(f"s_lshl_b32 s64, s64, 8")
    A(f"v_lshlrev_b32 v42, 4, v{vR}")
    A(f"v_add_u32 v42, s64, v42")
    A(f"s_lshr_b32 s64, s{sW}, 1")
    A(f"s_lshl_b32 s64, s64, 2")
    A(f"v_add_u32 v43, s64, v42")
    A(f"v_and_b32 v1, 0x17f, v42")
    A(f"v_mov_b32 v5, 0")
    A(f"s_cmp_lg_u32 s{sPB}, s{sWI}")
    A(f"s_cbranch_scc1 L_noinit")
    A(f"v_mov_b32 v{vMRUN}, v{vNEG}")
    for i in range(36):
        A(f"v_mov_b32 v{vO+i}, 0")
    A.label("L_noinit")
    if sched == 0:
        W(3); qk_mfma(0)
        VL(0)
        W(7); qk_mfma(1); qk_post(0)
        W(11); qk_mfma(2); qk_post(1)
        VL(1)
        W(15); qk_mfma(3); qk_post(2)
        VL(2)
        W(19); qk_mfma(4); qk_post(3)
        VL(3)
        qk_post(4)
    elif sched == 1:
        VL(0)
        W(3); qk_mfma(0)
        W(7); qk_mfma(1); A.nop(4); qk_post(0)
        VL(1)
        W(11); qk_mfma(2); qk_post(1)
        VL(2)
        W(15); qk_mfma(3); qk_post(2)
        VL(3)
        W(19); qk_mfma(4); qk_post(3)
        qk_post(4)
    elif sched == 2:
        W(3); qk_mfma(0)
        W(7); qk_mfma(1); A.nop(4); qk_post(0)
        W(11); qk_mfma(2); qk_post(1)
        VL(0)
        W(15); qk_mfma(3); qk_post(2)
        VL(1)
        W(19); qk_mfma(4); qk_post(3)
        VL(2)
        qk_post(4)
        VL(3)
    if v4pos is None:
        VL(4)
        v4pos = (9, 9, 9, 9)
    A(f"v_mov_b32 v15, v14")
    A.nop(2)
    A(f"v_permlane16_swap_b32 v14, v15")
    A(f"v_max_f32 v14, v14, v15")
    A(f"v_mov_b32 v15, v14")
    A.nop(2)
    A(f"v_permlane32_swap_b32 v14, v15")
    A(f"v_max3_f32 v{vMC}, v14, v15, v{vMRUN}")
    EM = vK + 4
    A(f"s_cmp_eq_u32 s{sLL}, 0")
    A(f"s_cbranch_scc1 L_ownmax")
    A.c("late wave, last round: common max of the head's four waves")
    A(f"ds_write_b32 v43, v{vMC} offset:{LDS_M}")
    A("s_waitcnt lgkmcnt(0)")
    A("s_barrier")
    A(f"ds_read_b128 v[{EM}:{EM+3}], v42 offset:{LDS_M}")
    A(f"ds_read_b64 v[92:93], v5 offset:{LDS_N}")
    A("s_waitcnt lgkmcnt(1)")
    A(f"v_max3_f32 v{vMC}, v{EM}, v{EM+1}, v{EM+2}")
    A(f"v_max_f32 v{vMC}, v{vMC}, v{EM+3}")
    A("s_waitcnt lgkmcnt(0)")
    A(f"v_readfirstlane_b32 s{sH}, v92")
    A(f"v_readfirstlane_b32 s{sH+1}, v93")
    A.label("L_ownmax")
    A(f"s_cmp_lg_u32 s{sPB}, s{sWI}")
    A(f"s_cbranch_scc1 L_rescale")
    A.label("L_rescaled")
    A(f"v_mov_b32 v{vMRUN}, v{vMC}")
    A(f"v_add_u32 v{vADDR}, s{sOFF+4}, v{vVOFF}")
    v4 = [("0", 0), ("0", 1024), (f"s{s8K}", 0), (f"s{s8K}", 1024)]
    pdst = {0: vPA, 1: vPB, 2: vPB+2, 3: vPC, 4: vPC+2}
    for s in range(5):
        x = vK + 16*s
        for n in range(4):
            if v4pos[n] == s:
                r = vV + 64 + 4*n
                A(f"buffer_load_dwordx4 v[{r}:{r+3}], v{vADDR}, s[{sV}:{sV+3}], {v4[n][0]} offen offset:{v4[n][1]} {pol}")
                issued[0] += 1
        for q in range(4):
            A(f"v_sub_f32 v{x+q}, v{x+q}, v{vMC}")
        for q in range(4):
            A(f"v_exp_f32 v{x+q}, v{x+q}")
        if s > 0:
            xp = vK + 16*(s-1)
            A(f"v_cvt_pk_bf16_f32 v{pdst[s-1]}, v{xp}, v{xp+1}")
            A(f"v_cvt_pk_bf16_f32 v{pdst[s-1]+1}, v{xp+2}, v{xp+3}")
    A(f"v_mfma_f32_16x16x16_bf16 v[{vL}:{vL+3}], v[{vONE}:{vONE+1}], v[{vPA}:{vPA+1}], v[{vL}:{vL+3}]")
    xp = vK + 64
    A(f"v_cvt_pk_bf16_f32 v{pdst[4]}, v{xp}, v{xp+1}")
    A(f"v_cvt_pk_bf16_f32 v{pdst[4]+1}, v{xp+2}, v{xp+3}")
    def addr_block():
        A(f"v_lshlrev_b32 v33, 4, v{vLANE}")
        A(f"s_and_b32 s62, s{sW}, 3")
        A(f"s_lshl_b32 s63, s62, 11")
        A(f"v_add_u32 v37, s63, v33")
        A(f"v_xor_b32 v32, 0x1000, v37")
        A(f"s_lshl_b32 s63, s62, 12")
        A(f"v_add_u32 v39, s63, v33")
        A(f"s_lshl_b32 s62, s62, 2")
        A(f"v_mov_b32 v36, s62")
        A(f"v_xor_b32 v15, 8, v36")
        A(f"s_and_b32 s62, s{sW}, 1")
        A(f"s_bfe_u32 s64, s{sW}, 0x10001")
        A(f"s_lshl_b32 s63, s62, 12")
        A(f"s_lshl_b32 s65, s64, 11")
        A(f"s_add_u32 s63, s63, s65")
        A(f"v_add_u32 v38, s63, v33")
        A(f"s_and_b32 s65, s2, 3")
        A(f"s_mul_i32 s65, s65, {GS}")
        A(f"s_lshl_b32 s66, s{sSI}, 13")
        A(f"s_add_u32 s65, s65, s66")
        A(f"v_add_u32 v34, s65, v38")
        A(f"s_movk_i32 s80, 0xf000")
    addr_block()
    A(f"v_mfma_f32_16x16x32_bf16 v[{vL}:{vL+3}], v[{vONE}:{vONE+3}], v[{vPB}:{vPB+3}], v[{vL}:{vL+3}]")
    A(f"v_mfma_f32_16x16x32_bf16 v[{vL}:{vL+3}], v[{vONE}:{vONE+3}], v[{vPC}:{vPC+3}], v[{vL}:{vL+3}]")

    def perms(s, dst, stride, sub, irange=range(8)):
        v = vV + 16*s
        for i in irange:
            sel = sSELLO if (i & 1) == 0 else sSELHI
            for u in range(2):
                r0 = v + 8*u + (i >> 1)
                r1 = v + 8*u + 4 + (i >> 1)
                A(f"v_perm_b32 v{dst + stride*i + sub + u}, v{r1}, v{r0}, s{sel}")

    ES = vV
    LW = vC
    def B1(pos):
        if pos == b1pos:
            A(f"s_cmp_eq_u32 s{sLL}, 0")
            A(f"s_cbranch_scc1 L_nob1")
            A("s_waitcnt lgkmcnt(0)")
            A(f"s_barrier")
            A(f"ds_read_b128 v[92:95], v1 offset:{LDS_L}")
            A(f"ds_read_b128 v[{ES}:{ES+3}], v38 offset:{LDS_XE}")
            A(f"ds_read_b128 v[{ES+4}:{ES+7}], v38 offset:{LDS_XE+1024}")
            A(f"ds_read_b128 v[{ES+8}:{ES+11}], v38 offset:{LDS_XE+8192}")
            A(f"ds_read_b128 v[{ES+12}:{ES+15}], v38 offset:{LDS_XE+8192+1024}")
            A.label("L_nob1")

    def pack(i0):
        for q in range(4):
            A(f"v_mov_b32_dpp v{vO+4*i0+q}, v{vO+4*i0+4+q} row_ror:8 row_mask:0xf bank_mask:0xc")

    tA, tB, tC = vK, vK + 16, vK + 48
    W(23)
    perms(0, tA, 2, 0)
    A(f"s_cmp_eq_u32 s{sLL}, 0")
    A(f"s_cbranch_scc1 L_nolw")
    A(f"ds_write_b32 v43, v{vL} offset:{LDS_L}")
    A.label("L_nolw")
    for i in range(8):
        o = vO + 4*i
        A(f"v_mfma_f32_16x16x16_bf16 v[{o}:{o+3}], v[{tA+2*i}:{tA+2*i+1}], v[{vPA}:{vPA+1}], v[{o}:{o+3}]")
    tagword(A, LW+5, LW+7)
    A(f"v_mov_b32 v{LW+6}, v{vMRUN}")
    A(f"v_mov_b32_dpp v{LW+6}, v{vMRUN} row_ror:8 row_mask:0xf bank_mask:0xc")
    W(27)
    B1(1)
    perms(1, tB, 4, 0)
    W(31)
    B1(2)
    perms(2, tB, 4, 2)
    for i in range(8):
        o = vO + 4*i
        A(f"v_mfma_f32_16x16x32_bf16 v[{o}:{o+3}], v[{tB+4*i}:{tB+4*i+3}], v[{vPB}:{vPB+3}], v[{o}:{o+3}]")
    W(35)
    B1(3)
    perms(3, tC, 4, 0)
    A(f"s_cmp_eq_u32 s{sLL}, 0")
    A(f"s_cbranch_scc1 L_tail_other")
    A.c("---- late wave, last round")
    assert b1pos in (1, 2, 3)
    for q in range(4):
        A(f"s_mov_b32 s{86+q}, {0x0c0c0000 | ((4+q) << 8) | q:#x}")
    A("s_waitcnt lgkmcnt(4)")
    A(f"v_add_f32 v92, v92, v93")
    A(f"v_add_f32 v94, v94, v95")
    A(f"v_add_f32 v92, v92, v94")
    A(f"v_rcp_f32 v{LW+4}, v92")
    A(f"v_log_f32 v{LW+7}, v92")
    A(f"v_mov_b32 v14, 1")
    A("s_waitcnt lgkmcnt(0)")
    for q in range(8):
        A(f"v_add_f32 v{ES+q}, v{ES+q}, v{ES+8+q}")
    A(f"v_add_f32 v{LW+6}, v{LW+6}, v{LW+7}")
    for q in range(8):
        A(f"v_mul_f32 v{ES+q}, v{ES+q}, v{LW+4}")
    for q in range(4):
        A(f"v_perm_b32 v{LW+q}, v{LW+5}, v{LW+6}, s{86+q}")
    A(f"s_cmp_ge_u32 s{sW}, 6")
    A(f"s_cbranch_scc1 L_tail_e1")
    R = vK
    def M(i):
        o = vO + 4*i
        A(f"v_mfma_f32_16x16x32_bf16 v[{o}:{o+3}], v[{tC+4*i}:{tC+4*i+3}], v[{vPC}:{vPC+3}], v[{o}:{o+3}]")
    def PM(i):
        perms(4, tC, 4, 2, [i])
    def late_tail(e):
        od = [4*(1-e) + x for x in range(4)] + [4*e + x for x in range(4)]
        W(39)
        if stamps: A(f"s_memrealtime s[{sST+6}:{sST+7}]")
        PM(od[0]); PM(od[1])
        for x in range(5):
            PM(od[x+2]); M(od[x])
        pack(od[0])
        A(f"ds_write_b128 v37, v[{vO+4*od[0]}:{vO+4*od[0]+3}] offset:{LDS_X}")
        PM(od[7]); M(od[5]); M(od[6])
        pack(od[2])
        M(od[7])
        A(f"ds_write_b128 v37, v[{vO+4*od[2]}:{vO+4*od[2]+3}] offset:{LDS_X+1024}")
        A(f"ds_write_b32 v36, v14 offset:{LDS_N+16}")
        A(f"ds_read_b32 v14, v15 offset:{LDS_N+16}")
        A(f"ds_read_b128 v[{R}:{R+3}], v32 offset:{LDS_X}")
        A(f"ds_read_b128 v[{R+4}:{R+7}], v32 offset:{LDS_X+1024}")
        pack(od[4])
        for q in range(4):
            A(f"v_fmac_f32 v{ES+q}, v{vO+4*od[4]+q}, v{LW+4}")
        pack(od[6])
        for q in range(4):
            A(f"v_fmac_f32 v{ES+4+q}, v{vO+4*od[6]+q}, v{LW+4}")
    def fin():
        if stamps: A("s_branch L_fin")
        else: A("s_endpgm")
    def join(e):
        if stamps:
            A("s_waitcnt lgkmcnt(0)")
        else:
            A("s_waitcnt lgkmcnt(2)")
        A(f"v_cmp_eq_u32 vcc, 0, v14")
        A(f"s_cbranch_vccz L_paired{e}")
        A.label(f"L_pair{e}")
        A(f"ds_read_b32 v14, v15 offset:{LDS_N+16}")
        A(f"ds_read_b128 v[{R}:{R+3}], v32 offset:{LDS_X}")
        A(f"ds_read_b128 v[{R+4}:{R+7}], v32 offset:{LDS_X+1024}")
        A("s_waitcnt lgkmcnt(2)")
        A(f"v_cmp_eq_u32 vcc, 0, v14")
        A(f"s_cbranch_vccnz L_pair{e}")
        A.label(f"L_paired{e}")
        for n in range(2):
            A(f"s_waitcnt lgkmcnt({1-n})")
            for q in range(4):
                A(f"v_fmac_f32 v{ES+4*n+q}, v{R+4*n+q}, v{LW+4}")
            for q in range(4):
                A(f"v_and_or_b32 v{ES+4*n+q}, v{ES+4*n+q}, s80, v{LW+q}")
            A(f"buffer_store_dwordx4 v[{ES+4*n}:{ES+4*n+3}], v34, s[{sWS}:{sWS+3}], 0 offen offset:{1024*n} {spol}")
        if stamps: A(f"s_memrealtime s[{sST+4}:{sST+5}]")
        fin()
    late_tail(0)
    join(0)
    A.label("L_tail_e1")
    late_tail(1)
    join(1)
    A.label("L_tail_other")
    W(39)
    if stamps: A(f"s_memrealtime s[{sST+6}:{sST+7}]")
    PM(0); PM(1)
    for i in range(8):
        if i + 2 < 8: PM(i+2)
        M(i)
    A(f"s_cmp_lg_u32 s{sMORE}, 0")
    A(f"s_cbranch_scc1 L_again")
    A.c("---- early waves: publish the max, later the state rescaled to the common max")
    A(f"ds_write_b32 v43, v{vMRUN} offset:{LDS_M}")
    A(f"ds_write_b32 v36, v5 offset:{LDS_N+16}")
    for j in range(4):
        pack(2*j)
    A(f"s_cmp_ge_u32 s{sW}, 3")
    A(f"s_cbranch_scc1 L_eA")
    consumer_addr(A)
    A(f"s_cmp_eq_u32 s{sW}, 2")
    A(f"s_cbranch_scc1 L_eA")
    A.c("waves 0,1: fetch the launch nonce (written by WG 0 at its start) and pass it on through LDS")
    A(f"s_mov_b64 exec, 1")
    A(f"s_mov_b32 s72, 0x100000")
    A.label("L_getnonce")
    A(f"buffer_load_dwordx2 v[92:93], v5, s[{sDBG}:{sDBG+3}], 0 offen offset:192 sc1")
    A(f"s_sub_u32 s72, s72, 1")
    A(f"s_cbranch_scc1 L_gotnonce")
    A("s_waitcnt vmcnt(0)")
    A(f"v_cmp_eq_u32 vcc, 0, v93")
    A(f"s_cbranch_vccnz L_getnonce")
    A.label("L_gotnonce")
    A("s_waitcnt vmcnt(0)")
    A(f"v_readfirstlane_b32 s{sH}, v92")
    A(f"v_readfirstlane_b32 s{sH+1}, v93")
    A(f"ds_write_b64 v5, v[92:93] offset:{LDS_N}")
    A(f"s_mov_b64 exec, -1")
    tagword(A, cB, 124)
    A.label("L_eA")
    A(f"v_mov_b32 v94, 1")
    A("s_waitcnt lgkmcnt(0)")
    A(f"s_barrier")
    if early_atom:
        A(f"s_cmp_lg_u32 s{sW}, 2")
        A(f"s_cbranch_scc1 L_noea")
        A(f"s_mov_b64 exec, 1")
        if early_atom > 1: A(f"s_sleep {early_atom - 1}")
        if stamps: A(f"s_memrealtime s[{sST+4}:{sST+5}]")
        A(f"buffer_atomic_add v94, v{cFL}, s[{sWS}:{sWS+3}], 0 offen sc0 sc1")
        A(f"s_mov_b64 exec, -1")
        if stamps: A("s_waitcnt lgkmcnt(0)")
        A.label("L_noea")
    A(f"ds_read_b128 v[{vQ}:{vQ+3}], v1 offset:{LDS_M}")
    A(f"ds_read_b32 v95, v5 offset:{LDS_N+4}")
    A("s_waitcnt lgkmcnt(1)")
    A(f"v_max3_f32 v14, v{vQ}, v{vQ+1}, v{vQ+2}")
    A(f"v_max_f32 v14, v14, v{vQ+3}")
    A(f"v_sub_f32 v14, v{LW+6}, v14")
    A(f"v_exp_f32 v14, v14")
    A.nop(1)
    A(f"v_mul_f32 v{vL}, v{vL}, v14")
    A(f"ds_write_b32 v43, v{vL} offset:{LDS_L}")
    for j in range(4):
        for q in range(4):
            A(f"v_mul_f32 v{vO+8*j+q}, v{vO+8*j+q}, v14")
        A(f"ds_write_b128 v39, v[{vO+8*j}:{vO+8*j+3}] offset:{LDS_XE+1024*j}")
    A("s_waitcnt lgkmcnt(0)")
    A(f"s_barrier")
    if dbg == 1:
        A(f"s_branch L_fin")
    A(f"s_cmp_ge_u32 s{sW}, 3")
    A(f"s_cbranch_scc1 L_fin")
    A(f"s_cmp_eq_u32 s{sW}, 2")
    A(f"s_cbranch_scc1 L_w2")
    if dbg == 2:
        A(f"s_branch L_fin")
    consumer(A, "L_c", stamps, sleep, lpol)
    A.label("L_w2")
    A(f"s_mov_b64 exec, 1")
    if not early_atom:
        if stamps: A(f"s_memrealtime s[{sST+4}:{sST+5}]")
        A(f"buffer_atomic_add v94, v{cFL}, s[{sWS}:{sWS+3}], 0 offen sc0 sc1")
    A("s_waitcnt vmcnt(0)")
    if stamps: A(f"s_memrealtime s[{sST+8}:{sST+9}]")
    A(f"v_cmp_eq_u32 vcc, 63, v94")
    A(f"s_cbranch_vccz L_fin")
    A(f"buffer_store_dword v95, v{cFL}, s[{sWS}:{sWS+3}], 0 offen offset:{FLAG_OFF} sc0 sc1")
    A.label("L_c_end")
    A.label("L_fin")
    if stamps:
        A("s_waitcnt vmcnt(0)")
        A(f"s_memrealtime s[{sST+10}:{sST+11}]")
        A("s_waitcnt lgkmcnt(0)")
        A("s_mov_b64 exec, 1")
        for i in range(6):
            A(f"v_mov_b32 v{16+i}, s{sST+2*i}")
        A("s_getreg_b32 s62, hwreg(HW_REG_XCC_ID)")
        A("v_mov_b32 v22, s62")
        A("v_mov_b32 v23, s72")
        A(f"s_lshl_b32 s62, s2, 3")
        A(f"s_add_u32 s62, s62, s{sW}")
        A(f"s_lshl_b32 s62, s62, 5")
        A(f"s_add_u32 s62, s62, {STAMP_BASE}")
        A(f"v_mov_b32 v1, s62")
        A(f"buffer_store_dwordx4 v[16:19], v1, s[{sWS}:{sWS+3}], 0 offen")
        A(f"buffer_store_dwordx4 v[20:23], v1, s[{sWS}:{sWS+3}], 0 offen offset:16")
    A.label("L_end")
    A("s_endpgm")
    A.c("---- WG 0, wave 0: clear the arrival counters, then publish this launch's nonce")
    A.label("L_mknonce")
    A(f"s_memrealtime s[{sH}:{sH+1}]")
    A(f"v_mov_b32 v94, 0")
    A(f"v_mul_u32_u24 v95, {CNT_STRIDE}, v{vLANE}")
    A(f"v_add_u32 v95, {CNT_BASE}, v95")
    A(f"s_mov_b64 exec, 15")
    A(f"global_store_dword v95, v94, s[22:23] sc0 sc1")
    A(f"s_waitcnt lgkmcnt(0)")
    A(f"s_mul_i32 s86, s{sH}, 0x9E3779B9")
    A(f"s_mul_i32 s87, s{sH+1}, 0x7F4A7C15")
    A(f"s_add_u32 s86, s86, s87")
    A(f"s_mul_hi_u32 s87, s{sH}, 0x7F4A7C15")
    A(f"s_add_u32 s86, s86, s87")
    A(f"s_mul_i32 s{sH}, s{sH}, 0x7F4A7C15")
    A(f"s_or_b32 s{sH+1}, s86, 0x80000000")
    A(f"v_mov_b32 v92, s{sH}")
    A(f"v_mov_b32 v93, s{sH+1}")
    A(f"s_waitcnt vmcnt(0)")
    A(f"s_mov_b64 exec, 1")
    A(f"global_store_dwordx2 v94, v[92:93], s[20:21] offset:192 sc0 sc1")
    A(f"s_mov_b64 exec, -1")
    A(f"s_branch L_nonced")
    A.c("---- rare paths (second round, long contexts)")
    A.label("L_again")
    for k in range(3):
        A(f"s_load_dword s{sBT+k}, s[{sBTA}:{sBTA+1}], {(5+k)*1024}")
    A(f"s_add_u32 s{sPB}, s{sPB}, 1280")
    A("s_waitcnt vmcnt(0) lgkmcnt(0)")
    A.nop(8)
    A("s_branch L_round")
    A.label("L_rescale")
    A(f"v_sub_f32 v15, v{vMRUN}, v{vMC}")
    A(f"v_exp_f32 v15, v15")
    A.nop(1)
    for i in range(36):
        A(f"v_mul_f32 v{vO+i}, v{vO+i}, v15")
    A("s_branch L_rescaled")


def kd(name, vgpr, sgpr=102):
    return f""".amdhsa_kernel {name}
  .amdhsa_next_free_vgpr {vgpr}
  .amdhsa_next_free_sgpr {sgpr}
  .amdhsa_accum_offset {vgpr}
  .amdhsa_group_segment_fixed_size 0
  .amdhsa_kernarg_size 64
  .amdhsa_user_sgpr_count 2
  .amdhsa_user_sgpr_kernarg_segment_ptr 1
  .amdhsa_system_sgpr_workgroup_id_x 1
.end_amdhsa_kernel
"""


DOC = """;
;  those publish normalised partials to d_ws as 16-B granules {4 x 20-bit value, lse byte, 4 tag bits}.
"""
OPOL = ['']
def gen(opol='', **kw):
    OPOL[0] = opol
    A = G()
    k1 = NAME + "_kernel"
    out = HEADER
    out += f"; @launch grid=(256,1,1) block=(512,1,1) lds={LDS_TOTAL}\n"
    out += DOC
    out += '.amdgcn_target "amdgcn-amd-amdhsa--gfx950"\n.text\n'
    main_kernel(A, k1, **kw)
    out += "\n".join(A.L) + "\n"
    out += f".fill (8192 - (. - {k1})) / 4, 4, 0xbf810000\n"
    out += '.section .rodata,"a"\n.p2align 6\n' + kd(k1, 256)
    return out


if __name__ == "__main__":
    kw = eval("dict(" + (sys.argv[2] if len(sys.argv) > 2 else "") + ")")
    open(sys.argv[1], "w").write(gen(**kw))
```

```python
import sys, struct

NAME = "standalone__paged_block_table_kv_pagedattention__decode"
KV_BYTES = 4100 * 16384
WS_BYTES = 268697600
GS = 512 << 10
LSE_BASE = 2 << 20
CNT_BASE = (2 << 20) + (128 << 10)
CNT_STRIDE = 4096 + 256
FLAG_OFF = 2048
STAMP_BASE = 4 << 20
NEG = 0xF149F2CA
SCALE = struct.unpack("<I", struct.pack("<f", 1.4426950408889634 / (128 ** 0.5)))[0]
HEADER = open("cdna_kernels/" + NAME + ".s.ref").read().split("; Override launch geometry")[0]
LDS_N = 0
LDS_M = 64
LDS_L = LDS_M + 512
LDS_X = 2048
LDS_XE = LDS_X + 8192
LDS_TOTAL = LDS_XE + 16384


class G:
    def __init__(self):
        self.L = []
    def __call__(self, s):
        self.L.append("  " + s)
    def label(self, s):
        self.L.append(s + ":")
    def c(self, s):
        self.L.append("  ; " + s)
    def nop(self, n):
        while n > 0:
            k = min(n, 16)
            self(f"s_nop {k-1}")
            n -= k


def srd(A, d, lo, nbytes):
    A(f"s_mov_b32 s{d}, s{lo}")
    A(f"s_mov_b32 s{d+1}, s{lo+1}")
    A(f"s_mov_b32 s{d+2}, {nbytes}")
    A(f"s_mov_b32 s{d+3}, 0x20000")


DPPM = "row_mask:0xf bank_mask:0xf"
vLANE, vR, vG = 2, 3, 4
vKOFF, vVOFF, vADDR = 6, 7, 8
vT0, vT1, vNEG, vMRUN, vMC = 9, 10, 11, 12, 13
vQ = 16
vC = 24
vPA, vPB, vPC = 40, 44, 48
vONE = 52
vO = 56
vL = 88
vK = 96
vV = 176
sW, sPR, sB, sSI, sWI = 3, 4, 5, 6, 7
sK, sV, sWS, sQ, sOUT, sDBG = 24, 28, 32, 36, 40, 44
sBT = 48
sLL = 53
sBTA = 54
sEFF, s8K, sSC, sSELLO, sSELHI = 56, 57, 58, 59, 60
sPB = 61
sOFF, sNV = 66, 71
sMORE = 76
sKVH = 77
sH = 84
sST = 90
cA, cB, cOUT, cFL, cLS, cG, cACC = 96, 97, 98, 99, 100, 104, 120


def tagword(A, dst, tmp):
    A(f"v_and_b32 v{tmp}, 2, v{vLANE}")
    A(f"v_cmp_eq_u32 vcc, 0, v{tmp}")
    A(f"v_mov_b32 v{dst}, s{sH}")
    A(f"v_mov_b32 v{tmp}, s{sH+1}")
    A(f"v_cndmask_b32 v{dst}, v{tmp}, v{dst}, vcc")
    A(f"v_and_b32 v{tmp}, 1, v{vLANE}")
    A(f"v_lshlrev_b32 v{tmp}, 2, v{tmp}")
    A(f"v_lshrrev_b32 v{dst}, v{tmp}, v{dst}")
    A(f"v_and_b32 v{dst}, 0x0f0f0f0f, v{dst}")


def consumer_addr(A):
    A.c("final-combine addresses: line si of the group, half = wave")
    A(f"s_and_b32 s62, s2, 3")
    A(f"s_mul_i32 s63, s62, {CNT_STRIDE}")
    A(f"s_add_u32 s63, s63, {CNT_BASE}")
    A(f"v_mov_b32 v{cFL}, s63")
    A(f"s_mul_i32 s63, s62, {GS}")
    A(f"s_lshl_b32 s64, s{sSI}, 7")
    A(f"s_add_u32 s63, s63, s64")
    A(f"s_lshl_b32 s64, s{sW}, 6")
    A(f"s_add_u32 s63, s63, s64")
    A(f"v_lshrrev_b32 v124, 2, v{vLANE}")
    A(f"v_and_b32 v125, 3, v{vLANE}")
    A(f"v_lshlrev_b32 v{cA}, 13, v124")
    A(f"v_lshl_add_u32 v{cA}, v125, 4, v{cA}")
    A(f"v_add_u32 v{cA}, s63, v{cA}")
    A(f"s_mov_b32 s8, 0x20000")
    A(f"s_mov_b32 s9, 0x40000")
    A(f"s_mov_b32 s10, 0x60000")
    A(f"s_mov_b32 s11, 0x05010400")
    A(f"s_lshr_b32 s64, s{sSI}, 5")
    A(f"s_lshl_b32 s67, s{sPR}, 1")
    A(f"s_add_u32 s67, s67, s64")
    A(f"s_lshl_b32 s67, s67, 3")
    A(f"s_lshl_b32 s66, s{sW}, 2")
    A(f"s_add_u32 s67, s67, s66")
    A(f"s_lshr_b32 s66, s2, 1")
    A(f"s_xor_b32 s66, s66, s64")
    A(f"s_and_b32 s66, s66, 1")
    A(f"s_lshl_b32 s66, s66, 5")
    A(f"s_add_u32 s67, s67, s66")
    A(f"s_lshl_b32 s67, s67, 7")
    A(f"s_bfe_u32 s66, s{sSI}, 0x20001")
    A(f"s_lshl_b32 s66, s66, 5")
    A(f"s_add_u32 s67, s67, s66")
    A(f"s_bfe_u32 s66, s{sSI}, 0x20003")
    A(f"s_lshl_b32 s66, s66, 1")
    A(f"s_add_u32 s67, s67, s66")
    A(f"s_and_b32 s66, s{sSI}, 1")
    A(f"s_add_u32 s67, s67, s66")
    A(f"v_lshlrev_b32 v{cOUT}, 7, v125")
    A(f"v_lshrrev_b32 v124, 4, v{vLANE}")
    A(f"v_lshl_add_u32 v{cOUT}, v124, 3, v{cOUT}")
    A(f"v_add_u32 v{cOUT}, s67, v{cOUT}")
    A(f"v_lshlrev_b32 v{cOUT}, 1, v{cOUT}")


def consumer(A, lab, stamps, sleep, lpol):
    so = ["0", "s8", "s9", "s10"]
    t0, t1, t2, t3 = 124, 125, 126, 127
    pG = [64, 66, 68, 70]
    def P(x): return f"s[{x}:{x+1}]"
    def ld_g(j):
        r = cG + 4*j
        A(f"buffer_load_dwordx4 v[{r}:{r+3}], v{cA}, s[{sWS}:{sWS+3}], {so[j]} offen {lpol}")
    def chk_g(j):
        r = cG + 4*j
        A(f"v_perm_b32 v{t0}, v{r+1}, v{r}, s11")
        A(f"v_perm_b32 v{t1}, v{r+3}, v{r+2}, s11")
        A(f"v_perm_b32 v{t2}, v{t1}, v{t0}, s{sSELHI}")
        A(f"v_perm_b32 v{cLS+j}, v{t1}, v{t0}, s{sSELLO}")
        A(f"v_and_b32 v{t2}, 0x0f0f0f0f, v{t2}")
        A(f"v_cmp_ne_u32_e64 {P(pG[j])}, v{t2}, v{cB}")
        if j < 2:
            for q in range(4):
                A(f"v_and_b32 v{r+q}, s80, v{r+q}")
    A(f"s_mov_b32 s72, 0x100000")
    A.c("wait for the group's go flag (a hint only: the tags decide)")
    A(f"s_mov_b64 exec, 1")
    A.label(f"{lab}_flag")
    A(f"buffer_load_dword v{t0}, v{cFL}, s[{sWS}:{sWS+3}], 0 offen offset:{FLAG_OFF} sc1")
    A(f"s_sub_u32 s72, s72, 1")
    A(f"s_cbranch_scc1 {lab}_end")
    A("s_waitcnt vmcnt(0)")
    A(f"v_cmp_eq_u32 vcc, s{sH+1}, v{t0}")
    if sleep:
        A(f"s_cbranch_vccnz {lab}_go")
        A(f"s_sleep {sleep}")
        A(f"s_branch {lab}_flag")
    else:
        A(f"s_cbranch_vccz {lab}_flag")
    A.label(f"{lab}_go")
    if stamps:
        A(f"s_memrealtime s[{sST+4}:{sST+5}]")
        A(f"s_mov_b32 s72, 0x100000")
    A(f"s_mov_b64 exec, -1")
    for j in range(4): ld_g(j)
    for j in range(4):
        A(f"s_waitcnt vmcnt({3-j})")
        chk_g(j)
    A.label(f"{lab}_test")
    A(f"s_or_b64 s[74:75], {P(pG[0])}, {P(pG[1])}")
    A(f"s_or_b64 s[62:63], {P(pG[2])}, {P(pG[3])}")
    A(f"s_or_b64 s[74:75], s[74:75], s[62:63]")
    A(f"s_cbranch_scc1 {lab}_retry")
    A(f"s_mov_b64 exec, -1")
    if stamps:
        A(f"s_memrealtime s[{sST+8}:{sST+9}]")
    L = cLS
    def clean(lo, hi):
        for x in range(lo, hi):
            A(f"v_and_b32 v{cG+x}, s80, v{cG+x}")
    A(f"v_max3_f32 v{t0}, v{L}, v{L+1}, v{L+2}")
    A(f"v_max_f32 v{t0}, v{t0}, v{L+3}")
    clean(8, 10)
    A(f"v_max_f32_dpp v{t0}, v{t0}, v{t0} row_ror:4 {DPPM}")
    clean(10, 12)
    A(f"v_max_f32_dpp v{t0}, v{t0}, v{t0} row_ror:8 {DPPM}")
    A(f"v_mov_b32 v{t1}, v{t0}")
    clean(12, 14)
    A(f"v_permlane16_swap_b32 v{t0}, v{t1}")
    A(f"v_max_f32 v{t0}, v{t0}, v{t1}")
    A(f"v_mov_b32 v{t1}, v{t0}")
    clean(14, 16)
    A(f"v_permlane32_swap_b32 v{t0}, v{t1}")
    A(f"v_max_f32 v{t0}, v{t0}, v{t1}")
    for j in range(4):
        A(f"v_sub_f32 v{L+j}, v{L+j}, v{t0}")
    for j in range(4):
        A(f"v_exp_f32 v{L+j}, v{L+j}")
    acc = cACC
    def wsum(j):
        op = "v_mul_f32" if j == 0 else "v_fmac_f32"
        for q in range(4):
            A(f"{op} v{acc+q}, v{L+j}, v{cG+4*j+q}")
    wsum(0)
    A(f"v_add_f32 v{t1}, v{L}, v{L+1}")
    A(f"v_add_f32 v{t2}, v{L+2}, v{L+3}")
    A(f"v_add_f32 v{t1}, v{t1}, v{t2}")
    wsum(1)
    A(f"v_add_f32_dpp v{t1}, v{t1}, v{t1} row_ror:4 {DPPM}")
    wsum(2)
    A(f"v_add_f32_dpp v{t1}, v{t1}, v{t1} row_ror:8 {DPPM}")
    wsum(3)
    A(f"v_mov_b32 v{t2}, v{t1}")
    A(f"v_permlane16_swap_b32 v{acc}, v{acc+1}")
    A(f"v_permlane16_swap_b32 v{acc+2}, v{acc+3}")
    A(f"v_permlane16_swap_b32 v{t1}, v{t2}")
    A(f"v_add_f32 v{acc}, v{acc}, v{acc+1}")
    A(f"v_add_f32 v{acc+2}, v{acc+2}, v{acc+3}")
    A(f"v_add_f32 v{t1}, v{t1}, v{t2}")
    A(f"v_mov_b32 v{t2}, v{t1}")
    A(f"v_permlane32_swap_b32 v{acc}, v{acc+2}")
    A.nop(1)
    A(f"v_permlane32_swap_b32 v{t1}, v{t2}")
    A(f"v_add_f32 v{acc}, v{acc}, v{acc+2}")
    A(f"v_add_f32 v{t1}, v{t1}, v{t2}")
    A(f"v_rcp_f32 v{t1}, v{t1}")
    A(f"v_add_f32_dpp v{acc}, v{acc}, v{acc} row_ror:4 {DPPM}")
    A(f"s_mov_b32 s62, 0x000f000f")
    A(f"s_mov_b32 s63, 0x000f000f")
    A(f"v_add_f32_dpp v{acc}, v{acc}, v{acc} row_ror:8 {DPPM}")
    A(f"v_mul_f32 v{acc}, v{acc}, v{t1}")
    A(f"v_cvt_pk_bf16_f32 v{acc}, v{acc}, v{acc}")
    A(f"s_mov_b64 exec, s[62:63]")
    A(f"buffer_store_short v{acc}, v{cOUT}, s[{sOUT}:{sOUT+3}], 0 offen {OPOL[0]}")
    if stamps: A(f"s_branch {lab}_end")
    else: A("s_endpgm")
    A.label(f"{lab}_retry")
    A(f"s_sub_u32 s72, s72, 1")
    A(f"s_cbranch_scc1 {lab}_end")
    A.c("a 4-lane group (64 B of one producer) is accepted or re-read as a whole")
    for j in range(4):
        A(f"s_wqm_b64 {P(pG[j])}, {P(pG[j])}")
        A(f"s_mov_b64 exec, {P(pG[j])}")
        A(f"s_cbranch_execz {lab}_s{j+1}")
        ld_g(j)
        A.label(f"{lab}_s{j+1}")
    A("s_waitcnt vmcnt(0)")
    for j in range(4):
        A(f"s_mov_b64 exec, {P(pG[j])}")
        chk_g(j)
    A(f"s_branch {lab}_test")


def main_kernel(A, name, pol="nt", stamps=False, sleep=2, spol="sc0 sc1", lpol="sc1", b1pos=3, v4pos=(0, 1, 2, 3), dbg=0, half=0, sched=0, prio=0, rot=None, early_atom=0):
    A.L.append(f".globl {name}")
    A.L.append(".p2align 8")
    A.L.append(f".type {name},@function")
    A.label(name)
    A("s_load_dwordx16 s[8:23], s[0:1], 0")
    A("s_cmp_ge_u32 s2, 256")
    A("s_cbranch_scc1 L_end")
    A.c("pull this kernel's code into L2 (one 1 KiB piece per wave)")
    A("s_getpc_b64 s[62:63]")
    A.label("L_pc")
    A("v_lshlrev_b32 v1, 4, v0")
    A(f"s_sub_u32 s62, s62, L_pc-{name}")
    A(f"s_subb_u32 s63, s63, 0")
    A(f"global_load_dwordx4 v[{vC}:{vC+3}], v1, s[62:63]")
    if stamps:
        A(f"s_memrealtime s[{sST}:{sST+1}]")
    A("v_lshrrev_b32 v1, 6, v0")
    A(f"v_and_b32 v{vLANE}, 63, v0")
    A(f"v_readfirstlane_b32 s{sW}, v1")
    A(f"v_and_b32 v{vR}, 15, v0")
    A(f"v_lshrrev_b32 v{vG}, 4, v{vLANE}")
    A(f"s_and_b32 s{sPR}, s2, 1")
    A(f"s_lshr_b32 s{sB}, s2, 1")
    A(f"s_xor_b32 s{sB}, s{sB}, s{sW}")
    A(f"s_and_b32 s{sB}, s{sB}, 1")
    A(f"s_lshr_b32 s{sSI}, s2, 2")
    A(f"s_lshr_b32 s{sWI}, s{sW}, 1")
    A(f"s_lshl_b32 s{sWI}, s{sWI}, 6")
    if rot is None:
        A(f"s_mul_i32 s62, s{sB}, 63")
        A(f"s_xor_b32 s62, s62, s{sSI}")
    else:
        A(f"s_mul_i32 s62, s{sB}, {rot}")
        A(f"s_add_u32 s62, s62, s{sSI}")
        A(f"s_and_b32 s62, s62, 63")
    A(f"s_add_u32 s{sWI}, s{sWI}, s62")
    A(f"s_lshl_b32 s62, s{sB}, 11")
    A(f"s_add_u32 s62, s62, s{sWI}")
    A(f"s_lshl_b32 s64, s62, 2")
    A(f"s_lshl_b32 s65, s{sB}, 2")
    A("s_waitcnt lgkmcnt(0)")
    A(f"s_add_u32 s{sBTA}, s14, s64")
    A(f"s_addc_u32 s{sBTA+1}, s15, 0")
    A(f"s_load_dword s{sEFF}, s[16:17], s65")
    for k in (4, 0, 1, 2, 3):
        A(f"s_load_dword s{sBT+k}, s[{sBTA}:{sBTA+1}], {k*1024}")
    A(f"s_or_b32 s62, s2, s{sW}")
    A(f"s_cbranch_scc0 L_mknonce")
    A.label("L_nonced")
    if prio:
        A(f"s_cmp_lt_u32 s{sW}, 4")
        A(f"s_cbranch_scc{1 if prio == 1 else 0} L_noprio")
        A(f"s_setprio 1")
        A.label("L_noprio")
    A(f"s_and_b32 s{sKVH}, s{sW}, 1")
    A(f"s_lshl_b32 s62, s{sPR}, 1")
    A(f"s_add_u32 s{sKVH}, s{sKVH}, s62")
    A(f"v_lshrrev_b32 v5, 1, v{vR}")
    A(f"v_lshlrev_b32 v{vKOFF}, 10, v5")
    A(f"v_lshl_add_u32 v{vKOFF}, v{vG}, 5, v{vKOFF}")
    A(f"v_and_b32 v5, 1, v{vR}")
    A(f"v_lshl_add_u32 v{vKOFF}, v5, 4, v{vKOFF}")
    A(f"s_lshl_b32 s66, s{sKVH}, 8")
    A(f"v_add_u32 v{vKOFF}, s66, v{vKOFF}")
    A(f"v_lshlrev_b32 v{vVOFF}, 11, v{vG}")
    A(f"v_lshl_add_u32 v{vVOFF}, v{vR}, 4, v{vVOFF}")
    A(f"v_add_u32 v{vVOFF}, s66, v{vVOFF}")
    A(f"v_and_b32 v5, 7, v{vR}")
    A(f"v_lshlrev_b32 v14, 8, v5")
    A(f"v_lshl_add_u32 v14, v{vG}, 5, v14")
    A(f"v_lshrrev_b32 v5, 3, v{vR}")
    A(f"v_lshl_add_u32 v14, v5, 4, v14")
    A(f"s_lshl_b32 s67, s{sB}, 13")
    A(f"s_lshl_b32 s68, s{sKVH}, 11")
    A(f"s_add_u32 s67, s67, s68")
    srd(A, sK, 10, KV_BYTES)
    srd(A, sQ, 8, 16384)
    A(f"s_movk_i32 s{s8K}, 0x2000")
    A(f"s_mov_b32 s{sPB}, s{sWI}")
    A("s_waitcnt lgkmcnt(0)")
    if stamps:
        A(f"s_memrealtime s[{sST+2}:{sST+3}]")
    A.c("eff = cl<=0 ? 32768 : min(cl, 32768);  cl<=0: Q reads as zero (uniform softmax over all keys)")
    A(f"s_cmp_le_i32 s{sEFF}, 0")
    A(f"s_cselect_b32 s67, 0x80000000, s67")
    A(f"s_cselect_b32 s{sEFF}, 0x8000, s{sEFF}")
    A(f"s_min_i32 s{sEFF}, s{sEFF}, 0x8000")
    A(f"v_add_u32 v14, s67, v14")
    A(f"buffer_load_dwordx4 v[{vQ}:{vQ+3}], v14, s[{sQ}:{sQ+3}], 0 offen")
    A(f"buffer_load_dwordx4 v[{vQ+4}:{vQ+7}], v14, s[{sQ}:{sQ+3}], 0 offen offset:128")
    A.label("L_round")
    ks = [4, 0, 1, 2, 3]
    A(f"s_lshl_b32 s62, s{sPB}, 4")
    A(f"s_sub_i32 s62, s{sEFF}, s62")

    def slot_setup(s):
        k = ks[s]
        A(f"s_sub_i32 s{sNV+s}, s62, {k*4096}")
        A(f"s_lshl_b32 s{sOFF+s}, s{sBT+k}, 14")
        A(f"s_cmp_gt_i32 s{sNV+s}, 0")
        A(f"s_cselect_b32 s{sOFF+s}, s{sOFF+s}, 0x80000000")

    def kload(s):
        A(f"v_add_u32 v{vADDR}, s{sOFF+s}, v{vKOFF}")
        for n, (so, o) in enumerate([("0", 0), ("0", 128), (f"s{s8K}", 0), (f"s{s8K}", 128)]):
            r = vK + 16*s + 4*n
            A(f"buffer_load_dwordx4 v[{r}:{r+3}], v{vADDR}, s[{sK}:{sK+3}], {so} offen offset:{o} {pol}")

    def vload(s):
        A(f"v_add_u32 v{vADDR}, s{sOFF+s}, v{vVOFF}")
        for n, (so, o) in enumerate([("0", 0), ("0", 1024), (f"s{s8K}", 0), (f"s{s8K}", 1024)]):
            r = vV + 16*s + 4*n
            A(f"buffer_load_dwordx4 v[{r}:{r+3}], v{vADDR}, s[{sV}:{sV+3}], {so} offen offset:{o} {pol}")

    def qk_mfma(s):
        c = vC + 8*(s & 1)
        k = vK + 16*s
        A(f"v_mfma_f32_16x16x32_bf16 v[{c}:{c+3}], v[{k}:{k+3}], v[{vQ}:{vQ+3}], 0")
        A(f"v_mfma_f32_16x16x32_bf16 v[{c+4}:{c+7}], v[{k+8}:{k+11}], v[{vQ}:{vQ+3}], 0")
        A(f"v_mfma_f32_16x16x32_bf16 v[{c}:{c+3}], v[{k+4}:{k+7}], v[{vQ+4}:{vQ+7}], v[{c}:{c+3}]")
        A(f"v_mfma_f32_16x16x32_bf16 v[{c+4}:{c+7}], v[{k+12}:{k+15}], v[{vQ+4}:{vQ+7}], v[{c+4}:{c+7}]")

    def qk_post(s):
        c = vC + 8*(s & 1)
        x = vK + 16*s
        A(f"s_sub_i32 s63, s{sNV+s}, 8")
        A(f"v_cmp_gt_i32_e64 s[80:81], s{sNV+s}, v{vT0}")
        A(f"v_cmp_gt_i32_e64 s[82:83], s{sNV+s}, v{vT1}")
        A(f"v_add_f32_dpp v{x}, v{c+1}, v{c} row_ror:8 {DPPM}")
        A(f"v_add_f32_dpp v{x+1}, v{c+3}, v{c+2} row_ror:8 {DPPM}")
        A(f"v_add_f32_dpp v{x+2}, v{c+5}, v{c+4} row_ror:8 {DPPM}")
        A(f"v_add_f32_dpp v{x+3}, v{c+7}, v{c+6} row_ror:8 {DPPM}")
        A(f"v_mul_f32 v{x}, s{sSC}, v{x}")
        A(f"v_mul_f32 v{x+1}, s{sSC}, v{x+1}")
        A(f"v_cndmask_b32_e64 v{x}, v{vNEG}, v{x}, s[80:81]")
        A(f"v_cndmask_b32_e64 v{x+1}, v{vNEG}, v{x+1}, s[82:83]")
        A(f"v_cmp_gt_i32_e64 s[80:81], s63, v{vT0}")
        A(f"v_cmp_gt_i32_e64 s[82:83], s63, v{vT1}")
        A(f"v_mul_f32 v{x+2}, s{sSC}, v{x+2}")
        A(f"v_mul_f32 v{x+3}, s{sSC}, v{x+3}")
        A(f"v_cndmask_b32_e64 v{x+2}, v{vNEG}, v{x+2}, s[80:81]")
        A(f"v_cndmask_b32_e64 v{x+3}, v{vNEG}, v{x+3}, s[82:83]")
        if s == 0:
            A(f"v_max3_f32 v14, v{x}, v{x+1}, v{x+2}")
            A(f"v_max_f32 v14, v14, v{x+3}")
        else:
            A(f"v_max3_f32 v14, v14, v{x}, v{x+1}")
            A(f"v_max3_f32 v14, v14, v{x+2}, v{x+3}")

    issued = [0]
    def W(idx):
        A(f"s_waitcnt vmcnt({issued[0] - 1 - idx})")
    def KL(s):
        kload(s); issued[0] += 4
    def VL(s):
        vload(s); issued[0] += 4

    for s in range(5):
        slot_setup(s)
        KL(s)
    A.c("round flags: MORE = another round follows; LL = late wave in its last round")
    A(f"s_cmp_gt_i32 s62, {5*4096}")
    A(f"s_cselect_b32 s{sMORE}, 1, 0")
    A(f"s_cselect_b32 s63, 0, s{sW}")
    A(f"s_cmp_ge_u32 s63, 4")
    A(f"s_cselect_b32 s{sLL}, 1, 0")
    srd(A, sV, 12, KV_BYTES)
    srd(A, sWS, 22, WS_BYTES)
    srd(A, sOUT, 18, 16384)
    srd(A, sDBG, 20, 256)
    A(f"s_mov_b32 s{sSC}, {SCALE:#x}")
    A(f"s_mov_b32 s{sSELLO}, 0x05040100")
    A(f"s_mov_b32 s{sSELHI}, 0x07060302")
    A(f"v_lshlrev_b32 v{vT0}, 1, v{vG}")
    A(f"v_or_b32 v{vT1}, 1, v{vT0}")
    A(f"v_mov_b32 v{vNEG}, {NEG:#x}")
    A(f"v_mov_b32 v{vONE}, 0x3f803f80")
    for i in range(1, 4):
        A(f"v_mov_b32 v{vONE+i}, v{vONE}")
    A(f"s_and_b32 s64, s{sW}, 1")
    A(f"s_lshl_b32 s64, s64, 8")
    A(f"v_lshlrev_b32 v42, 4, v{vR}")
    A(f"v_add_u32 v42, s64, v42")
    A(f"s_lshr_b32 s64, s{sW}, 1")
    A(f"s_lshl_b32 s64, s64, 2")
    A(f"v_add_u32 v43, s64, v42")
    A(f"v_and_b32 v1, 0x17f, v42")
    A(f"v_mov_b32 v5, 0")
    A(f"s_cmp_lg_u32 s{sPB}, s{sWI}")
    A(f"s_cbranch_scc1 L_noinit")
    A(f"v_mov_b32 v{vMRUN}, v{vNEG}")
    for i in range(36):
        A(f"v_mov_b32 v{vO+i}, 0")
    A.label("L_noinit")
    if sched == 0:
        W(3); qk_mfma(0)
        VL(0)
        W(7); qk_mfma(1); qk_post(0)
        W(11); qk_mfma(2); qk_post(1)
        VL(1)
        W(15); qk_mfma(3); qk_post(2)
        VL(2)
        W(19); qk_mfma(4); qk_post(3)
        VL(3)
        qk_post(4)
    elif sched == 1:
        VL(0)
        W(3); qk_mfma(0)
        W(7); qk_mfma(1); A.nop(4); qk_post(0)
        VL(1)
        W(11); qk_mfma(2); qk_post(1)
        VL(2)
        W(15); qk_mfma(3); qk_post(2)
        VL(3)
        W(19); qk_mfma(4); qk_post(3)
        qk_post(4)
    elif sched == 2:
        W(3); qk_mfma(0)
        W(7); qk_mfma(1); A.nop(4); qk_post(0)
        W(11); qk_mfma(2); qk_post(1)
        VL(0)
        W(15); qk_mfma(3); qk_post(2)
        VL(1)
        W(19); qk_mfma(4); qk_post(3)
        VL(2)
        qk_post(4)
        VL(3)
    if v4pos is None:
        VL(4)
        v4pos = (9, 9, 9, 9)
    A(f"v_mov_b32 v15, v14")
    A.nop(2)
    A(f"v_permlane16_swap_b32 v14, v15")
    A(f"v_max_f32 v14, v14, v15")
    A(f"v_mov_b32 v15, v14")
    A.nop(2)
    A(f"v_permlane32_swap_b32 v14, v15")
    A(f"v_max3_f32 v{vMC}, v14, v15, v{vMRUN}")
    EM = vK + 4
    A(f"s_cmp_eq_u32 s{sLL}, 0")
    A(f"s_cbranch_scc1 L_ownmax")
    A.c("late wave, last round: common max of the head's four waves")
    A(f"ds_write_b32 v43, v{vMC} offset:{LDS_M}")
    A("s_waitcnt lgkmcnt(0)")
    A("s_barrier")
    A(f"ds_read_b128 v[{EM}:{EM+3}], v42 offset:{LDS_M}")
    A(f"ds_read_b64 v[92:93], v5 offset:{LDS_N}")
    A("s_waitcnt lgkmcnt(1)")
    A(f"v_max3_f32 v{vMC}, v{EM}, v{EM+1}, v{EM+2}")
    A(f"v_max_f32 v{vMC}, v{vMC}, v{EM+3}")
    A("s_waitcnt lgkmcnt(0)")
    A(f"v_readfirstlane_b32 s{sH}, v92")
    A(f"v_readfirstlane_b32 s{sH+1}, v93")
    A.label("L_ownmax")
    A(f"s_cmp_lg_u32 s{sPB}, s{sWI}")
    A(f"s_cbranch_scc1 L_rescale")
    A.label("L_rescaled")
    A(f"v_mov_b32 v{vMRUN}, v{vMC}")
    A(f"v_add_u32 v{vADDR}, s{sOFF+4}, v{vVOFF}")
    v4 = [("0", 0), ("0", 1024), (f"s{s8K}", 0), (f"s{s8K}", 1024)]
    pdst = {0: vPA, 1: vPB, 2: vPB+2, 3: vPC, 4: vPC+2}
    for s in range(5):
        x = vK + 16*s
        for n in range(4):
            if v4pos[n] == s:
                r = vV + 64 + 4*n
                A(f"buffer_load_dwordx4 v[{r}:{r+3}], v{vADDR}, s[{sV}:{sV+3}], {v4[n][0]} offen offset:{v4[n][1]} {pol}")
                issued[0] += 1
        for q in range(4):
            A(f"v_sub_f32 v{x+q}, v{x+q}, v{vMC}")
        for q in range(4):
            A(f"v_exp_f32 v{x+q}, v{x+q}")
        if s > 0:
            xp = vK + 16*(s-1)
            A(f"v_cvt_pk_bf16_f32 v{pdst[s-1]}, v{xp}, v{xp+1}")
            A(f"v_cvt_pk_bf16_f32 v{pdst[s-1]+1}, v{xp+2}, v{xp+3}")
    A(f"v_mfma_f32_16x16x16_bf16 v[{vL}:{vL+3}], v[{vONE}:{vONE+1}], v[{vPA}:{vPA+1}], v[{vL}:{vL+3}]")
    xp = vK + 64
    A(f"v_cvt_pk_bf16_f32 v{pdst[4]}, v{xp}, v{xp+1}")
    A(f"v_cvt_pk_bf16_f32 v{pdst[4]+1}, v{xp+2}, v{xp+3}")
    def addr_block():
        A(f"v_lshlrev_b32 v33, 4, v{vLANE}")
        A(f"s_and_b32 s62, s{sW}, 3")
        A(f"s_lshl_b32 s63, s62, 11")
        A(f"v_add_u32 v37, s63, v33")
        A(f"v_xor_b32 v32, 0x1000, v37")
        A(f"s_lshl_b32 s63, s62, 12")
        A(f"v_add_u32 v39, s63, v33")
        A(f"s_lshl_b32 s62, s62, 2")
        A(f"v_mov_b32 v36, s62")
        A(f"v_xor_b32 v15, 8, v36")
        A(f"s_and_b32 s62, s{sW}, 1")
        A(f"s_bfe_u32 s64, s{sW}, 0x10001")
        A(f"s_lshl_b32 s63, s62, 12")
        A(f"s_lshl_b32 s65, s64, 11")
        A(f"s_add_u32 s63, s63, s65")
        A(f"v_add_u32 v38, s63, v33")
        A(f"s_and_b32 s65, s2, 3")
        A(f"s_mul_i32 s65, s65, {GS}")
        A(f"s_lshl_b32 s66, s{sSI}, 13")
        A(f"s_add_u32 s65, s65, s66")
        A(f"v_add_u32 v34, s65, v38")
        A(f"s_movk_i32 s80, 0xf000")
    addr_block()
    A(f"v_mfma_f32_16x16x32_bf16 v[{vL}:{vL+3}], v[{vONE}:{vONE+3}], v[{vPB}:{vPB+3}], v[{vL}:{vL+3}]")
    A(f"v_mfma_f32_16x16x32_bf16 v[{vL}:{vL+3}], v[{vONE}:{vONE+3}], v[{vPC}:{vPC+3}], v[{vL}:{vL+3}]")

    def perms(s, dst, stride, sub, irange=range(8)):
        v = vV + 16*s
        for i in irange:
            sel = sSELLO if (i & 1) == 0 else sSELHI
            for u in range(2):
                r0 = v + 8*u + (i >> 1)
                r1 = v + 8*u + 4 + (i >> 1)
                A(f"v_perm_b32 v{dst + stride*i + sub + u}, v{r1}, v{r0}, s{sel}")

    ES = vV
    LW = vC
    def B1(pos):
        if pos == b1pos:
            A(f"s_cmp_eq_u32 s{sLL}, 0")
            A(f"s_cbranch_scc1 L_nob1")
            A("s_waitcnt lgkmcnt(0)")
            A(f"s_barrier")
            A(f"ds_read_b128 v[92:95], v1 offset:{LDS_L}")
            A(f"ds_read_b128 v[{ES}:{ES+3}], v38 offset:{LDS_XE}")
            A(f"ds_read_b128 v[{ES+4}:{ES+7}], v38 offset:{LDS_XE+1024}")
            A(f"ds_read_b128 v[{ES+8}:{ES+11}], v38 offset:{LDS_XE+8192}")
            A(f"ds_read_b128 v[{ES+12}:{ES+15}], v38 offset:{LDS_XE+8192+1024}")
            A.label("L_nob1")

    def pack(i0):
        for q in range(4):
            A(f"v_mov_b32_dpp v{vO+4*i0+q}, v{vO+4*i0+4+q} row_ror:8 row_mask:0xf bank_mask:0xc")

    tA, tB, tC = vK, vK + 16, vK + 48
    W(23)
    perms(0, tA, 2, 0)
    A(f"s_cmp_eq_u32 s{sLL}, 0")
    A(f"s_cbranch_scc1 L_nolw")
    A(f"ds_write_b32 v43, v{vL} offset:{LDS_L}")
    A.label("L_nolw")
    for i in range(8):
        o = vO + 4*i
        A(f"v_mfma_f32_16x16x16_bf16 v[{o}:{o+3}], v[{tA+2*i}:{tA+2*i+1}], v[{vPA}:{vPA+1}], v[{o}:{o+3}]")
    tagword(A, LW+5, LW+7)
    A(f"v_mov_b32 v{LW+6}, v{vMRUN}")
    A(f"v_mov_b32_dpp v{LW+6}, v{vMRUN} row_ror:8 row_mask:0xf bank_mask:0xc")
    W(27)
    B1(1)
    perms(1, tB, 4, 0)
    W(31)
    B1(2)
    perms(2, tB, 4, 2)
    for i in range(8):
        o = vO + 4*i
        A(f"v_mfma_f32_16x16x32_bf16 v[{o}:{o+3}], v[{tB+4*i}:{tB+4*i+3}], v[{vPB}:{vPB+3}], v[{o}:{o+3}]")
    W(35)
    B1(3)
    perms(3, tC, 4, 0)
    A(f"s_cmp_eq_u32 s{sLL}, 0")
    A(f"s_cbranch_scc1 L_tail_other")
    A.c("---- late wave, last round")
    assert b1pos in (1, 2, 3)
    for q in range(4):
        A(f"s_mov_b32 s{86+q}, {0x0c0c0000 | ((4+q) << 8) | q:#x}")
    A("s_waitcnt lgkmcnt(4)")
    A(f"v_add_f32 v92, v92, v93")
    A(f"v_add_f32 v94, v94, v95")
    A(f"v_add_f32 v92, v92, v94")
    A(f"v_rcp_f32 v{LW+4}, v92")
    A(f"v_log_f32 v{LW+7}, v92")
    A(f"v_mov_b32 v14, 1")
    A("s_waitcnt lgkmcnt(0)")
    for q in range(8):
        A(f"v_add_f32 v{ES+q}, v{ES+q}, v{ES+8+q}")
    A(f"v_add_f32 v{LW+6}, v{LW+6}, v{LW+7}")
    for q in range(8):
        A(f"v_mul_f32 v{ES+q}, v{ES+q}, v{LW+4}")
    for q in range(4):
        A(f"v_perm_b32 v{LW+q}, v{LW+5}, v{LW+6}, s{86+q}")
    A(f"s_cmp_ge_u32 s{sW}, 6")
    A(f"s_cbranch_scc1 L_tail_e1")
    R = vK
    def M(i):
        o = vO + 4*i
        A(f"v_mfma_f32_16x16x32_bf16 v[{o}:{o+3}], v[{tC+4*i}:{tC+4*i+3}], v[{vPC}:{vPC+3}], v[{o}:{o+3}]")
    def PM(i):
        perms(4, tC, 4, 2, [i])
    def late_tail(e):
        od = [4*(1-e) + x for x in range(4)] + [4*e + x for x in range(4)]
        W(39)
        if stamps: A(f"s_memrealtime s[{sST+6}:{sST+7}]")
        PM(od[0]); PM(od[1])
        for x in range(5):
            PM(od[x+2]); M(od[x])
        pack(od[0])
        A(f"ds_write_b128 v37, v[{vO+4*od[0]}:{vO+4*od[0]+3}] offset:{LDS_X}")
        PM(od[7]); M(od[5]); M(od[6])
        pack(od[2])
        M(od[7])
        A(f"ds_write_b128 v37, v[{vO+4*od[2]}:{vO+4*od[2]+3}] offset:{LDS_X+1024}")
        A(f"ds_write_b32 v36, v14 offset:{LDS_N+16}")
        A(f"ds_read_b32 v14, v15 offset:{LDS_N+16}")
        A(f"ds_read_b128 v[{R}:{R+3}], v32 offset:{LDS_X}")
        A(f"ds_read_b128 v[{R+4}:{R+7}], v32 offset:{LDS_X+1024}")
        pack(od[4])
        for q in range(4):
            A(f"v_fmac_f32 v{ES+q}, v{vO+4*od[4]+q}, v{LW+4}")
        pack(od[6])
        for q in range(4):
            A(f"v_fmac_f32 v{ES+4+q}, v{vO+4*od[6]+q}, v{LW+4}")
    def fin():
        if stamps: A("s_branch L_fin")
        else: A("s_endpgm")
    def join(e):
        if stamps:
            A("s_waitcnt lgkmcnt(0)")
        else:
            A("s_waitcnt lgkmcnt(2)")
        A(f"v_cmp_eq_u32 vcc, 0, v14")
        A(f"s_cbranch_vccz L_paired{e}")
        A.label(f"L_pair{e}")
        A(f"ds_read_b32 v14, v15 offset:{LDS_N+16}")
        A(f"ds_read_b128 v[{R}:{R+3}], v32 offset:{LDS_X}")
        A(f"ds_read_b128 v[{R+4}:{R+7}], v32 offset:{LDS_X+1024}")
        A("s_waitcnt lgkmcnt(2)")
        A(f"v_cmp_eq_u32 vcc, 0, v14")
        A(f"s_cbranch_vccnz L_pair{e}")
        A.label(f"L_paired{e}")
        for n in range(2):
            A(f"s_waitcnt lgkmcnt({1-n})")
            for q in range(4):
                A(f"v_fmac_f32 v{ES+4*n+q}, v{R+4*n+q}, v{LW+4}")
            for q in range(4):
                A(f"v_and_or_b32 v{ES+4*n+q}, v{ES+4*n+q}, s80, v{LW+q}")
            A(f"buffer_store_dwordx4 v[{ES+4*n}:{ES+4*n+3}], v34, s[{sWS}:{sWS+3}], 0 offen offset:{1024*n} {spol}")
        if stamps: A(f"s_memrealtime s[{sST+4}:{sST+5}]")
        fin()
    late_tail(0)
    join(0)
    A.label("L_tail_e1")
    late_tail(1)
    join(1)
    A.label("L_tail_other")
    W(39)
    if stamps: A(f"s_memrealtime s[{sST+6}:{sST+7}]")
    PM(0); PM(1)
    for i in range(8):
        if i + 2 < 8: PM(i+2)
        M(i)
    A(f"s_cmp_lg_u32 s{sMORE}, 0")
    A(f"s_cbranch_scc1 L_again")
    A.c("---- early waves: publish the max, later the state rescaled to the common max")
    A(f"ds_write_b32 v43, v{vMRUN} offset:{LDS_M}")
    A(f"ds_write_b32 v36, v5 offset:{LDS_N+16}")
    for j in range(4):
        pack(2*j)
    A(f"s_cmp_ge_u32 s{sW}, 3")
    A(f"s_cbranch_scc1 L_eA")
    consumer_addr(A)
    A(f"s_cmp_eq_u32 s{sW}, 2")
    A(f"s_cbranch_scc1 L_eA")
    A.c("waves 0,1: fetch the launch nonce (written by WG 0 at its start) and pass it on through LDS")
    A(f"s_mov_b64 exec, 1")
    A(f"s_mov_b32 s72, 0x100000")
    A.label("L_getnonce")
    A(f"buffer_load_dwordx2 v[92:93], v5, s[{sDBG}:{sDBG+3}], 0 offen offset:192 sc1")
    A(f"s_sub_u32 s72, s72, 1")
    A(f"s_cbranch_scc1 L_gotnonce")
    A("s_waitcnt vmcnt(0)")
    A(f"v_cmp_eq_u32 vcc, 0, v93")
    A(f"s_cbranch_vccnz L_getnonce")
    A.label("L_gotnonce")
    A("s_waitcnt vmcnt(0)")
    A(f"v_readfirstlane_b32 s{sH}, v92")
    A(f"v_readfirstlane_b32 s{sH+1}, v93")
    A(f"ds_write_b64 v5, v[92:93] offset:{LDS_N}")
    A(f"s_mov_b64 exec, -1")
    tagword(A, cB, 124)
    A.label("L_eA")
    A(f"v_mov_b32 v94, 1")
    A("s_waitcnt lgkmcnt(0)")
    A(f"s_barrier")
    if early_atom:
        A(f"s_cmp_lg_u32 s{sW}, 2")
        A(f"s_cbranch_scc1 L_noea")
        A(f"s_mov_b64 exec, 1")
        if early_atom > 1: A(f"s_sleep {early_atom - 1}")
        if stamps: A(f"s_memrealtime s[{sST+4}:{sST+5}]")
        A(f"buffer_atomic_add v94, v{cFL}, s[{sWS}:{sWS+3}], 0 offen sc0 sc1")
        A(f"s_mov_b64 exec, -1")
        if stamps: A("s_waitcnt lgkmcnt(0)")
        A.label("L_noea")
    A(f"ds_read_b128 v[{vQ}:{vQ+3}], v1 offset:{LDS_M}")
    A(f"ds_read_b32 v95, v5 offset:{LDS_N+4}")
    A("s_waitcnt lgkmcnt(1)")
    A(f"v_max3_f32 v14, v{vQ}, v{vQ+1}, v{vQ+2}")
    A(f"v_max_f32 v14, v14, v{vQ+3}")
    A(f"v_sub_f32 v14, v{LW+6}, v14")
    A(f"v_exp_f32 v14, v14")
    A.nop(1)
    A(f"v_mul_f32 v{vL}, v{vL}, v14")
    A(f"ds_write_b32 v43, v{vL} offset:{LDS_L}")
    for j in range(4):
        for q in range(4):
            A(f"v_mul_f32 v{vO+8*j+q}, v{vO+8*j+q}, v14")
        A(f"ds_write_b128 v39, v[{vO+8*j}:{vO+8*j+3}] offset:{LDS_XE+1024*j}")
    A("s_waitcnt lgkmcnt(0)")
    A(f"s_barrier")
    if dbg == 1:
        A(f"s_branch L_fin")
    A(f"s_cmp_ge_u32 s{sW}, 3")
    A(f"s_cbranch_scc1 L_fin")
    A(f"s_cmp_eq_u32 s{sW}, 2")
    A(f"s_cbranch_scc1 L_w2")
    if dbg == 2:
        A(f"s_branch L_fin")
    consumer(A, "L_c", stamps, sleep, lpol)
    A.label("L_w2")
    A(f"s_mov_b64 exec, 1")
    if not early_atom:
        if stamps: A(f"s_memrealtime s[{sST+4}:{sST+5}]")
        A(f"buffer_atomic_add v94, v{cFL}, s[{sWS}:{sWS+3}], 0 offen sc0 sc1")
    A("s_waitcnt vmcnt(0)")
    if stamps: A(f"s_memrealtime s[{sST+8}:{sST+9}]")
    A(f"v_cmp_eq_u32 vcc, 63, v94")
    A(f"s_cbranch_vccz L_fin")
    A(f"buffer_store_dword v95, v{cFL}, s[{sWS}:{sWS+3}], 0 offen offset:{FLAG_OFF} sc0 sc1")
    A.label("L_c_end")
    A.label("L_fin")
    if stamps:
        A("s_waitcnt vmcnt(0)")
        A(f"s_memrealtime s[{sST+10}:{sST+11}]")
        A("s_waitcnt lgkmcnt(0)")
        A("s_mov_b64 exec, 1")
        for i in range(6):
            A(f"v_mov_b32 v{16+i}, s{sST+2*i}")
        A("s_getreg_b32 s62, hwreg(HW_REG_XCC_ID)")
        A("v_mov_b32 v22, s62")
        A("v_mov_b32 v23, s72")
        A(f"s_lshl_b32 s62, s2, 3")
        A(f"s_add_u32 s62, s62, s{sW}")
        A(f"s_lshl_b32 s62, s62, 5")
        A(f"s_add_u32 s62, s62, {STAMP_BASE}")
        A(f"v_mov_b32 v1, s62")
        A(f"buffer_store_dwordx4 v[16:19], v1, s[{sWS}:{sWS+3}], 0 offen")
        A(f"buffer_store_dwordx4 v[20:23], v1, s[{sWS}:{sWS+3}], 0 offen offset:16")
    A.label("L_end")
    A("s_endpgm")
    A.c("---- WG 0, wave 0: clear the arrival counters, then publish this launch's nonce")
    A.label("L_mknonce")
    A(f"s_memrealtime s[{sH}:{sH+1}]")
    A(f"v_mov_b32 v94, 0")
    A(f"v_mul_u32_u24 v95, {CNT_STRIDE}, v{vLANE}")
    A(f"v_add_u32 v95, {CNT_BASE}, v95")
    A(f"s_mov_b64 exec, 15")
    A(f"global_store_dword v95, v94, s[22:23] sc0 sc1")
    A(f"s_waitcnt lgkmcnt(0)")
    A(f"s_mul_i32 s86, s{sH}, 0x9E3779B9")
    A(f"s_mul_i32 s87, s{sH+1}, 0x7F4A7C15")
    A(f"s_add_u32 s86, s86, s87")
    A(f"s_mul_hi_u32 s87, s{sH}, 0x7F4A7C15")
    A(f"s_add_u32 s86, s86, s87")
    A(f"s_mul_i32 s{sH}, s{sH}, 0x7F4A7C15")
    A(f"s_or_b32 s{sH+1}, s86, 0x80000000")
    A(f"v_mov_b32 v92, s{sH}")
    A(f"v_mov_b32 v93, s{sH+1}")
    A(f"s_waitcnt vmcnt(0)")
    A(f"s_mov_b64 exec, 1")
    A(f"global_store_dwordx2 v94, v[92:93], s[20:21] offset:192 sc0 sc1")
    A(f"s_mov_b64 exec, -1")
    A(f"s_branch L_nonced")
    A.c("---- rare paths (second round, long contexts)")
    A.label("L_again")
    for k in range(3):
        A(f"s_load_dword s{sBT+k}, s[{sBTA}:{sBTA+1}], {(5+k)*1024}")
    A(f"s_add_u32 s{sPB}, s{sPB}, 1280")
    A("s_waitcnt vmcnt(0) lgkmcnt(0)")
    A.nop(8)
    A("s_branch L_round")
    A.label("L_rescale")
    A(f"v_sub_f32 v15, v{vMRUN}, v{vMC}")
    A(f"v_exp_f32 v15, v15")
    A.nop(1)
    for i in range(36):
        A(f"v_mul_f32 v{vO+i}, v{vO+i}, v15")
    A("s_branch L_rescaled")


def kd(name, vgpr, sgpr=102):
    return f""".amdhsa_kernel {name}
  .amdhsa_next_free_vgpr {vgpr}
  .amdhsa_next_free_sgpr {sgpr}
  .amdhsa_accum_offset {vgpr}
  .amdhsa_group_segment_fixed_size 0
  .amdhsa_kernarg_size 64
  .amdhsa_user_sgpr_count 2
  .amdhsa_user_sgpr_kernarg_segment_ptr 1
  .amdhsa_system_sgpr_workgroup_id_x 1
.end_amdhsa_kernel
"""


DOC = """;
;  those publish normalised partials to d_ws as 16-B granules {4 x 20-bit value, lse byte, 4 tag bits}.
"""
OPOL = ['']
def gen(opol='', **kw):
    OPOL[0] = opol
    A = G()
    k1 = NAME + "_kernel"
    out = HEADER
    out += f"; @launch grid=(256,1,1) block=(512,1,1) lds={LDS_TOTAL}\n"
    out += DOC
    out += '.amdgcn_target "amdgcn-amd-amdhsa--gfx950"\n.text\n'
    main_kernel(A, k1, **kw)
    out += "\n".join(A.L) + "\n"
    out += f".fill (8192 - (. - {k1})) / 4, 4, 0xbf810000\n"
    out += '.section .rodata,"a"\n.p2align 6\n' + kd(k1, 256)
    return out


if __name__ == "__main__":
    kw = eval("dict(" + (sys.argv[2] if len(sys.argv) > 2 else "") + ")")
    open(sys.argv[1], "w").write(gen(**kw))
```
